```python
import torch

def _softmax(x, axis=-1):
    return torch.softmax(x, dim=axis)
def _gelu(x):
    return torch.nn.functional.gelu(x, approximate="tanh")
def _silu(x):
    return torch.nn.functional.silu(x)
def _sigmoid(x):
    return torch.sigmoid(x)
def _layernorm(x, axis=-1, eps=1e-5):
    m = x.mean(dim=axis, keepdim=True)
    v = x.var(dim=axis, keepdim=True, unbiased=False)
    return (x - m) / torch.sqrt(v + eps)
def _scatter_add(tgt, idx, src, axis=0):
    return tgt.clone().index_add_(axis, idx, src)
def _segment_sum(src, seg, n):
    out = torch.zeros((n,) + src.shape[1:], dtype=src.dtype)
    return out.index_add_(0, seg, src)
def _pad(x, pw):
    flat = tuple(v for pair in reversed(pw) for v in pair)
    return torch.nn.functional.pad(x, flat)

kernel_name = 'interleave_layers__ssm_conv_s4d__mixer_token_mlp__prompt'

def setup_inputs():

    _w = (lambda a: (lambda t: t.to(torch.bfloat16) if t.is_floating_point() else t)(torch.as_tensor(a)))
    def _A_setup():
        Bsz, L, D, N = 1, 2048, 512, 128
        return {
            "u": _w((lambda *s: torch.randn(*s, dtype=torch.bfloat16) * 0.05)(Bsz, L, D)),
            "log_A_real": _w((lambda *s: torch.randn(*s, dtype=torch.bfloat16) * 3.2)(D, N) * 0.5),
            "A_imag": _w((lambda *s: torch.randn(*s, dtype=torch.bfloat16) * 0.05)(D, N) * 3.14),
            "C_real": _w((lambda *s: torch.randn(*s, dtype=torch.bfloat16) * 0.05)(D, N) / N ** 0.5),
            "C_imag": _w((lambda *s: torch.randn(*s, dtype=torch.bfloat16) * 0.1)(D, N) / N ** 0.5),
            "log_dt": _w((lambda *s: torch.randn(*s, dtype=torch.bfloat16) * 0.05)(D) * 0.5 - 4.0),
            "D_skip": _w((lambda *s: torch.randn(*s, dtype=torch.bfloat16) * 0.05)(D)),
        }
    _A_in = _A_setup()

    def _B_setup():
        B, S, D, F = 1, 2048, 512, 1792
        return {
            "x": _w((lambda *s: torch.randn(*s, dtype=torch.bfloat16) * 0.05)(B, S, D)),
            "w1": _w((lambda *s: torch.randn(*s, dtype=torch.bfloat16) * 0.4)(S, F) * (S ** -0.5)),
            "b1": _w((lambda *s: torch.randn(*s, dtype=torch.bfloat16) * 12.8)(F) * 0.02),
            "w2": _w((lambda *s: torch.randn(*s, dtype=torch.bfloat16) * 0.4)(F, S) * (F ** -0.5)),
            "b2": _w((lambda *s: torch.randn(*s, dtype=torch.bfloat16) * 6.4)(S) * 0.02),
        }
    _B_in = _B_setup()

    return {
        "A_u": _A_in["u"],
        "A_log_A_real": _A_in["log_A_real"],
        "A_A_imag": _A_in["A_imag"],
        "A_C_real": _A_in["C_real"],
        "A_C_imag": _A_in["C_imag"],
        "A_log_dt": _A_in["log_dt"],
        "A_D_skip": _A_in["D_skip"],
        "B_x": _B_in["x"],
        "B_w1": _B_in["w1"],
        "B_b1": _B_in["b1"],
        "B_w2": _B_in["w2"],
        "B_b2": _B_in["b2"],
    }

def reference(A_u, A_log_A_real, A_A_imag, A_C_real, A_C_imag, A_log_dt, A_D_skip, B_x, B_w1, B_b1, B_w2, B_b2):
    def _A_ref(u, log_A_real, A_imag, C_real, C_imag, log_dt, D_skip):
        L = u.shape[1]
        dt = torch.exp(log_dt)
        A = -torch.exp(log_A_real) + 1j * A_imag
        C = (C_real + 1j * C_imag) * dt[:, None]
        pos = (lambda x, dt: x.to(dt))(torch.arange(L), log_dt.dtype)
        P = torch.exp((A * dt[:, None])[:, :, None] * pos[None, None, :])
        K = 2.0 * torch.einsum("dn,dnl->dl", C, P).real
        L2 = 2 * L
        u_t = (lambda x, *d: x.permute(*d))(u, 0, 2, 1)
        Kf = (lambda x, *a, **k: torch.fft.rfft(x.float(), *a, **k))(K, L2)
        Uf = (lambda x, *a, **k: torch.fft.rfft(x.float(), *a, **k))(u_t, L2)
        y = (lambda x, *a, **k: torch.fft.irfft(x, *a, **k).to(torch.bfloat16))(Uf * Kf[None, :, :], L2)[:, :, :L]
        y = (lambda x, *d: x.permute(*d))(y, 0, 2, 1)
        return y + u * D_skip[None, None, :]

    def _B_ref(x, w1, b1, w2, b2):
        B, S, D = x.shape
        h = _layernorm(x, axis=-1)
        u = torch.einsum("bsd,sf->bdf", h, w1) + b1
        u = _gelu(u)
        y = torch.einsum("bdf,fs->bds", u, w2) + b2
        return (lambda x, *d: x.permute(*d))(y, 0, 2, 1)

    x = A_u
    x = x + _A_ref(_layernorm(x, axis=-1), A_log_A_real, A_A_imag, A_C_real, A_C_imag, A_log_dt, A_D_skip)
    x = x + _B_ref(_layernorm(x, axis=-1), B_w1, B_b1, B_w2, B_b2)
    x = x + _A_ref(_layernorm(x, axis=-1), A_log_A_real, A_A_imag, A_C_real, A_C_imag, A_log_dt, A_D_skip)
    x = x + _B_ref(_layernorm(x, axis=-1), B_w1, B_b1, B_w2, B_b2)
    return x
```

```python
import re

class Reg:
    def __init__(self, kind, lo, n=1):
        self.kind, self.lo, self.n = kind, lo, n
    def __str__(self):
        if self.n == 1: return f"{self.kind}{self.lo}"
        return f"{self.kind}[{self.lo}:{self.lo+self.n-1}]"
    __repr__ = __str__
    def __format__(self, spec): return str(self)
    def __getitem__(self, i):
        if isinstance(i, slice):
            a = 0 if i.start is None else i.start
            b = self.n if i.stop is None else i.stop
            assert 0 <= a < b <= self.n, (a, b, self.n)
            return Reg(self.kind, self.lo + a, b - a)
        assert 0 <= i < self.n, (i, self.n)
        return Reg(self.kind, self.lo + i, 1)
    def __len__(self): return self.n

class Alloc:
    def __init__(self, kind, start, limit):
        self.kind, self.limit = kind, limit
        self.used = [False] * limit
        for i in range(start): self.used[i] = True
        self.hi = start
    def __call__(self, n=1, align=None):
        if align is None:
            align = 1 if n == 1 else (2 if n < 4 else 4)
            if self.kind == 'v' or self.kind == 'a':
                align = 1 if n == 1 else 2
        lo = 0
        while True:
            lo = (lo + align - 1) // align * align
            assert lo + n <= self.limit, f"out of {self.kind} regs"
            if not any(self.used[lo:lo+n]): break
            lo += 1
        for i in range(lo, lo+n): self.used[i] = True
        self.hi = max(self.hi, lo + n)
        return Reg(self.kind, lo, n)
    def free(self, *rs):
        for r in rs:
            for i in range(r.lo, r.lo + r.n):
                assert self.used[i]
                self.used[i] = False

_REG_RE = re.compile(r'(?<![\w.])([vsa])(?:(\d+)|\[(\d+):(\d+)\])(?![\w])')
TRANS = ('v_exp_f32','v_log_f32','v_rcp_f32','v_rsq_f32','v_sqrt_f32','v_sin_f32','v_cos_f32','v_rcp_iflag_f32',
         'v_exp_f16','v_log_f16','v_rcp_f16','v_rsq_f16','v_sqrt_f16','v_sin_f16','v_cos_f16')

def regs_of(tok):
    out = set()
    for m in _REG_RE.finditer(tok):
        k = m.group(1)
        if m.group(2) is not None: out.add((k, int(m.group(2))))
        else:
            for i in range(int(m.group(3)), int(m.group(4)) + 1): out.add((k, i))
    if re.search(r'\bvcc(_lo|_hi)?\b', tok): out.add(('x', 'vcc'))
    if re.search(r'\bexec(_lo|_hi)?\b', tok): out.add(('x', 'exec'))
    if re.search(r'\bm0\b', tok): out.add(('x', 'm0'))
    return out

def split_ops(s):
    ops, depth, cur = [], 0, ''
    for ch in s:
        if ch in '[(': depth += 1
        if ch in '])': depth -= 1
        if ch == ',' and depth == 0:
            ops.append(cur.strip()); cur = ''
        else: cur += ch
    if cur.strip(): ops.append(cur.strip())
    return ops

class Ins:
    def __init__(self, text):
        self.text = text
        t = text.split(';')[0].strip()
        self.label = None
        self.op = None
        self.dst, self.src = set(), set()
        if not t or t.startswith('.'):
            self.kind = 'dir'; return
        if t.endswith(':'):
            self.kind = 'label'; self.label = t[:-1]; return
        parts = t.split(None, 1)
        op = parts[0]; rest = parts[1] if len(parts) > 1 else ''
        base = re.sub(r'_(e32|e64|dpp|sdwa)$', '', op)
        self.op = base
        ops = split_ops(rest)
        self.ops = ops
        R = [regs_of(o) for o in ops]
        allr = set().union(*R) if R else set()
        self.dpp = ('_dpp' in op) or bool(re.search(r'\b(row_|quad_perm|wave_|row_bcast|row_newbcast)', rest))
        self.sdwa = ('_sdwa' in op) or 'dst_sel' in rest
        self.opsel = 'op_sel' in rest and not (base.startswith('v_pk_') and base.endswith('_f32'))
        if base.startswith('v_mfma') or base.startswith('v_smfmac'):
            self.kind = 'mfma'
            self.dst = R[0]; self.srcA = R[1]; self.srcB = R[2]; self.srcC = R[3] if len(R) > 3 else set()
            self.src = self.srcA | self.srcB | self.srcC
            self.dstr, self.cstr = ops[0], ops[3].split()[0] if len(ops) > 3 else ''
            if '32x32x16' in base or '32x32x8' in base: self.passes = 8
            elif '16x16x32' in base or '16x16x16' in base: self.passes = 4
            elif '32x32x2_f32' in base: self.passes = 16
            elif '16x16x4_f32' in base: self.passes = 8
            elif '4x4x4' in base: self.passes = 2
            else: raise Exception('unknown mfma ' + base)
            self.sgemm = base.endswith('_f32') and ('x2_f32' in base or 'x4_f32' in base or 'x1_' in base)
        elif base.startswith('v_'):
            self.kind = 'valu'
            if base == 'v_nop': pass
            elif base.startswith('v_cmpx'):
                self.dst = R[0] | {('x', 'exec')}; self.src = set().union(*R[1:])
            elif base.startswith('v_cmp'):
                self.dst = R[0]; self.src = set().union(*R[1:])
            elif base in ('v_add_co_u32','v_sub_co_u32','v_subrev_co_u32','v_addc_co_u32','v_subb_co_u32','v_mad_u64_u32','v_div_scale_f32'):
                self.dst = R[0] | R[1]; self.src = set().union(*R[2:])
            elif base.startswith('v_permlane') and 'swap' in base or base == 'v_swap_b32':
                self.dst = R[0] | R[1]; self.src = R[0] | R[1]
            else:
                self.dst = R[0]; self.src = set().union(*R[1:]) if len(R) > 1 else set()
                if base.startswith(('v_fmac', 'v_mac', 'v_pk_fmac', 'v_dot2c', 'v_dot4c', 'v_writelane')) or self.dpp or self.sdwa or self.opsel:
                    self.src |= R[0]
                if base == 'v_cndmask_b32' and len(ops) == 3: self.src.add(('x', 'vcc'))
                if base == 'v_div_fmas_f32': self.src.add(('x', 'vcc'))
            self.trans = base in TRANS
        elif base.startswith(('buffer_', 'global_', 'flat_', 'scratch_')):
            self.kind = 'vmem'
            self.lds = bool(re.search(r'\blds\b', rest)) or '_lds_' in base
            self.store = 'store' in base or 'atomic' in base
            if base in ('buffer_wbl2', 'buffer_inv') or not ops or not R: pass
            elif 'atomic' in base:
                self.src = allr
                if 'sc0' in rest: self.dst = R[0]
            elif self.store or self.lds: self.src = allr
            else:
                self.dst = R[0]; self.src = set().union(*R[1:])
            self.wide = self.store and ('x3' in base or 'x4' in base or 'cmpswap_x2' in base)
            if self.wide:
                self.data = R[0] if base.startswith('buffer_') else R[1]
        elif base.startswith('ds_'):
            self.kind = 'ds'
            if base.startswith(('ds_read', 'ds_bpermute', 'ds_permute', 'ds_swizzle')) or '_rtn' in base:
                self.dst = R[0]; self.src = set().union(*R[1:]) if len(R) > 1 else set()
            else: self.src = allr
            self.addtid = 'addtid' in base
        elif base.startswith('s_'):
            self.kind = 'salu'
            if base.startswith(('s_load', 's_buffer_load', 's_memtime', 's_memrealtime', 's_atomic')):
                self.kind = 'smem'
                self.dst = R[0]; self.src = set().union(*R[1:]) if len(R) > 1 else set()
            elif base.startswith(('s_cmp', 's_bitcmp', 's_waitcnt', 's_barrier', 's_nop', 's_branch', 's_cbranch', 's_endpgm', 's_setprio', 's_sleep', 's_setpc', 's_setreg')):
                self.src = allr
            else:
                self.dst = R[0] if R else set(); self.src = set().union(*R[1:]) if len(R) > 1 else set()
                if 'saveexec' in base: self.dst = self.dst | {('x', 'exec')}
        else:
            raise Exception('unknown instruction: ' + text)
    def states(self):
        if self.kind in ('dir', 'label'): return 0
        if self.op == 's_nop': return int(self.ops[0], 0) + 1
        return 1

def vg(s): return {r for r in s if r[0] in 'va'}
def sg(s): return {r for r in s if r[0] == 's' or r == ('x', 'vcc')}

def need(p, c):
    n = 0
    pk, ck = p.kind, c.kind
    if pk == 'valu':
        dv, ds_ = vg(p.dst), sg(p.dst)
        if ck == 'mfma' and dv & c.src: n = max(n, 2)
        if ck == 'valu':
            if c.dpp and dv & c.src: n = max(n, 2)
            if c.op.startswith('v_permlane') and dv & c.src: n = max(n, 2)
            if c.op in ('v_readlane_b32', 'v_readfirstlane_b32') and dv & c.src: n = max(n, 1)
            if p.trans and dv & c.src: n = max(n, 1)
            if (p.sdwa or p.opsel) and dv & (c.src | c.dst): n = max(n, 1)
            if ds_ & c.src:
                n = max(n, 2)
                if c.op in ('v_readlane_b32', 'v_writelane_b32', 'v_div_fmas_f32'): n = max(n, 4)
            if ('x', 'exec') in p.dst:
                if c.dpp: n = max(n, 5)
                if c.op in ('v_readlane_b32', 'v_readfirstlane_b32', 'v_writelane_b32') or c.op.startswith('v_permlane'): n = max(n, 4)
                if ('x', 'exec') in c.src: n = max(n, 2)
        if ck == 'mfma' and ('x', 'exec') in p.dst: n = max(n, 4)
        if ck == 'vmem' and ds_ & c.src: n = max(n, 5)
        if ck in ('salu', 'smem') and ds_ & c.src: n = max(n, 1)
        if p.trans and ck in ('vmem', 'ds', 'mfma') and dv & c.src: n = max(n, 1 if ck != 'mfma' else 2)
    if pk == 'salu' and ('x', 'm0') in p.dst:
        if (ck == 'vmem' and c.lds) or (ck == 'ds' and c.addtid): n = max(n, 1)
    if pk == 'vmem' and getattr(p, 'wide', False):
        if vg(c.dst) & p.data: n = max(n, 2 if ck in ('valu',) else 1)
    if pk == 'mfma':
        idx = {2: 0, 4: 1, 8: 2, 16: 3}[p.passes]
        if not p.sgemm:
            if ck == 'mfma':
                if c.srcC & p.dst:
                    if c.cstr == p.dstr and c.passes == p.passes and not c.sgemm: n = max(n, [2, 0, 0, 0][idx])
                    else: n = max(n, [4, 6, 10, 18][idx])
                if (c.srcA | c.srcB) & p.dst: n = max(n, [5, 8, 12, 20][idx])
                if (c.dst & p.dst) and not (c.srcC & p.dst): n = max(n, [5, 8, 12, 20][idx])
            else:
                if (c.src | c.dst) & p.dst: n = max(n, [5, 8, 12, 20][idx])
                if ck == 'valu' and c.dst & p.srcC: n = max(n, [1, 3, 7, 15][idx])
        else:
            if ck == 'mfma':
                if c.srcC & p.dst:
                    if c.cstr == p.dstr and c.sgemm: n = max(n, [2, 0, 0, 0][idx])
                    else: n = max(n, [2, 4, 8, 16][idx])
                if (c.srcA | c.srcB) & p.dst: n = max(n, [4, 6, 10, 18][idx])
            elif (c.src | c.dst) & p.dst: n = max(n, [4, 6, 10, 18][idx])
    return n

def fix_hazards(lines):
    ins = [Ins(l) for l in lines]
    MAXW = 20
    changed = True
    rounds = 0
    while changed:
        changed = False
        rounds += 1
        labels = {x.label: i for i, x in enumerate(ins) if x.kind == 'label'}
        preds = {}
        for i, x in enumerate(ins):
            if x.op and (x.op.startswith('s_cbranch') or x.op == 's_branch'):
                tgt = x.ops[0]
                if tgt in labels: preds.setdefault(labels[tgt], []).append(i)
        out = []
        for i, c in enumerate(ins):
            if c.kind in ('dir', 'label') or c.op == 's_nop':
                out.append(c); continue
            worst = 0
            stack = [(i - 1, 0)]
            seen = {}
            while stack:
                j, dist = stack.pop()
                while j >= 0 and dist < MAXW:
                    if seen.get(j, 99) <= dist: break
                    seen[j] = dist
                    p = ins[j]
                    if p.kind == 'label':
                        for b in preds.get(j, []): stack.append((b, dist))
                        if j > 0 and ins[j-1].op in ('s_branch', 's_endpgm', 's_setpc_b64'): break
                    elif p.kind != 'dir':
                        w = need(p, c) - dist
                        if w > worst: worst = w
                        dist += p.states()
                    j -= 1
            if worst > 0:
                changed = True
                while worst > 0:
                    k = min(worst, 16)
                    out.append(Ins(f"    s_nop {k-1}"))
                    worst -= k
            out.append(c)
            if changed:
                out.extend(ins[i+1:]); break
        ins = out
        if changed and rounds > 20000: raise Exception('hazard loop')
    return [x.text for x in ins]

class Kern:
    def __init__(self, name, nsgpr_start=3):
        self.name = name
        self.lines = []
        self.v = Alloc('v', 1, 256)
        self.a = Alloc('a', 0, 256)
        self.s = Alloc('s', nsgpr_start, 102)
        self.nlab = 0
    def __call__(self, text):
        for l in text.split('\n'):
            l = l.strip()
            if not l: continue
            if l.endswith(':') or l.startswith('.'): self.lines.append(l)
            else: self.lines.append('    ' + l)
    def label(self, base='L'):
        self.nlab += 1
        return f"{self.name}_{base}{self.nlab}"
    def text(self, hazards=True):
        body = fast_fix(self.lines) if hazards else self.lines
        return (f".text\n.globl {self.name}\n.p2align 8\n.type {self.name},@function\n{self.name}:\n" + '\n'.join(body) + "\n")
    def desc(self, extra=''):
        nv = max(self.v.hi, 1)
        acc = (nv + 3) // 4 * 4
        tot = acc + self.a.hi if self.a.hi else nv
        return (f".amdhsa_kernel {self.name}\n  .amdhsa_next_free_vgpr {tot}\n  .amdhsa_next_free_sgpr {max(self.s.hi, 16)}\n"
                f"  .amdhsa_accum_offset {acc}\n  .amdhsa_group_segment_fixed_size 0\n  .amdhsa_kernarg_size 120\n"
                f"  .amdhsa_user_sgpr_count 2\n  .amdhsa_user_sgpr_kernarg_segment_ptr 1\n  .amdhsa_system_sgpr_workgroup_id_x 1\n"
                f"  .amdhsa_float_denorm_mode_32 3\n{extra}.end_amdhsa_kernel\n")

def fast_fix(lines):
    ins = [Ins(l) for l in lines]
    MAXW = 20
    for rounds in range(10):
        changed = False
        labels = {x.label: x for x in ins if x.kind == 'label'}
        out = []
        pos_prev = {id(x): i for i, x in enumerate(ins)}
        fwd = {}
        back = {}
        for i, x in enumerate(ins):
            if x.op and (x.op.startswith('s_cbranch') or x.op == 's_branch'):
                back.setdefault(x.ops[0], []).append(i)
        for i, c in enumerate(ins):
            if c.kind in ('dir', 'label') or c.op == 's_nop':
                out.append(c); continue
            worst = 0
            stack = [(i - 1, 0)]
            seen = {}
            while stack:
                j, dist = stack.pop()
                while j >= 0 and dist < MAXW:
                    if seen.get(j, 99) <= dist: break
                    seen[j] = dist
                    p = ins[j]
                    if p.kind == 'label':
                        for b in back.get(p.label, []): stack.append((b, dist))
                        jj = j - 1
                        while jj >= 0 and ins[jj].kind == 'dir': jj -= 1
                        if jj >= 0 and ins[jj].op in ('s_branch', 's_endpgm', 's_setpc_b64'): break
                    elif p.kind != 'dir':
                        w = need(p, c) - dist
                        if w > worst: worst = w
                        dist += p.states() + getattr(p, 'pad_before', 0)
                    j -= 1
            c.pad_before = 0
            if worst > 0:
                changed = True
                c.pad_before = worst
                while worst > 0:
                    k = min(worst, 16)
                    out.append(Ins(f"    s_nop {k-1}"))
                    worst -= k
            out.append(c)
        for x in out: x.pad_before = 0
        ins = out
        if not changed: break
    else:
        raise Exception('hazard fix did not converge')
    return [x.text for x in ins]

def build_file(header_lines, launches, kerns):
    out = list(header_lines)
    for (n, g, b, l) in launches:
        out.append(f"; @launch kernel={n} grid=({g},1,1) block=({b},1,1) lds={l}")
    out.append('.amdgcn_target "amdgcn-amd-amdhsa--gfx950"')
    for k in kerns: out.append(k.text())
    out.append('.section .rodata,"a"')
    for k in kerns:
        out.append('.p2align 6')
        out.append(k.desc())
    return '\n'.join(out) + '\n'
```

```python
import sys, math
from asmgen import *

NAME = 'interleave_layers__ssm_conv_s4d__mixer_token_mlp__prompt'
S, D, F = 2048, 512, 1792
BS = 8192 + 128
MB = 1 << 20
PADSZ = 256 * BS
def _ws_map():
    off = 0; m = {}
    for nm in ['U1', 'Y1', 'H1', 'GA1', 'Z1', 'U2', 'Y2', 'H2', 'GA2', 'X3']:
        m[nm] = off
        off += PADSZ
    m['KI'] = off; off += 256 * 32768
    m['PROF'] = (off + 4095) // 4096 * 4096; off = m['PROF'] + 256 * 4 * 256
    m['END'] = off
    return m
WS = _ws_map()
HS = 128 * 2048
GS = 112 * 2048
WREG = 28672
SB = 4 * WREG
KCS = 4160
KCH = 4 * KCS
UB = SB + 33792
UCS = 4672
RED = UB + 2 * UCS
TROW = 528
PS = 8192 + 64
LDS_TOTAL = 163840
SPIN_MAX = 1 << 15
LOG2E = 1.4426950408889634

def f2h(x):
    import struct
    return hex(struct.unpack('<I', struct.pack('<f', x))[0])

class Cnt:
    def __init__(self, k, name, mx):
        self.k, self.name, self.mx = k, name, mx
        self.n = 0; self.done = 0
    def issue(self, cnt=1):
        self.n += cnt
        return self.n
    def wait(self, tok):
        if tok <= self.done: return
        c = min(self.n - tok, self.mx)
        self.k(f"s_waitcnt {self.name}({c})")
        self.done = max(self.done, self.n - c)
    def wait_all(self):
        self.k(f"s_waitcnt {self.name}(0)")
        self.done = self.n

class Gen:
    def __init__(self, prof=False, opts=None):
        self.prof = prof
        self.o = dict(opts or {})
        k = self.k = Kern(NAME + '_kernel')
        self.vm = Cnt(k, 'vmcnt', 63); self.lg = Cnt(k, 'lgkmcnt', 15)
        self.ool = []
        self.nstamp = 0; self.stamp_names = []
    def vmem(self, text):
        self.k(text); return self.vm.issue()
    def ds(self, text):
        self.k(text); return self.lg.issue()
    def stamp(self, name):
        if not self.prof: return
        k = self.k
        k(f"s_memrealtime {self.sStamp}")
        self.lg.wait_all()
        k(f"v_writelane_b32 {self.vStamp}, {self.sStamp[0]}, {self.nstamp}")
        self.nstamp += 1; self.stamp_names.append(name)
    def barrier(self):
        self.lg.wait(self.lg.n)
        self.k("s_barrier")
    def lane(self, dst):
        self.k(f"v_and_b32 {dst}, 63, v0")
    def srd(self, srd, base, nbytes):
        self.k(f"s_mov_b32 {srd[0]}, {base[0]}\ns_mov_b32 {srd[1]}, {base[1]}\ns_mov_b32 {srd[2]}, {hex(nbytes)}\ns_mov_b32 {srd[3]}, 0x20000")
    def hook(self, name):
        for act in self.sched.get(name, []):
            act()

    def prologue(self):
        k = self.k
        self.lend = k.label('end')
        self.P = k.s(16, 4); self.P2 = k.s(8, 4); self.P3 = k.s(4, 4); self.PW = k.s(2)
        k(f"s_cmp_ge_u32 s2, 256\ns_cbranch_scc1 {self.lend}")
        k(f"s_load_dwordx16 {self.P}, s[0:1], 0\ns_load_dwordx8 {self.P2}, s[0:1], 64\ns_load_dwordx4 {self.P3}, s[0:1], 96\ns_load_dwordx2 {self.PW}, s[0:1], 112")
        self.pX0, self.pLA, self.pAI, self.pCR, self.pCI, self.pDT, self.pDS = [self.P[2*i:2*i+2] for i in range(7)]
        self.pW1, self.pB1, self.pW2, self.pB2 = [self.P2[2*i:2*i+2] for i in range(4)]
        self.pOUT, self.pDBG = self.P3[0:2], self.P3[2:4]
        self.sW = k.s(); self.sTB = k.s(); self.sM = k.s(); self.sN1 = k.s(); self.sN2 = k.s(); self.sJN = k.s()
        self.t0 = k.s(); self.t1 = k.s(); self.t2 = k.s(); self.t3 = k.s(); self.sSpin = k.s(); self.sRet = k.s(2); self.sTBo = k.s()
        self.rWS = k.s(4, 4); self.rW1 = k.s(4, 4); self.rW2 = k.s(4, 4)
        self.W2V = Reg('v', 144, 112)
        for i in range(144, 256): k.v.used[i] = True
        k.v.hi = 256
        self.W1A = k.a(256, 4)
        self.XP = k.v(8, 2)
        self.vT16 = k.v()
        if self.prof:
            self.vStamp = k.v(); self.sStamp = k.s(2)
            k(f"v_mov_b32 {self.vStamp}, 0")
        t = k.v()
        k(f"v_lshrrev_b32 {t}, 6, v0\nv_lshlrev_b32 {self.vT16}, 4, v0\nv_readfirstlane_b32 {self.sW}, {t}")
        k.v.free(t)
        t0, t1 = self.t0, self.t1
        k(f"s_and_b32 {t0}, s2, 7\ns_lshr_b32 {t1}, s2, 3\ns_lshl_b32 {self.sTB}, {t0}, 5\ns_add_u32 {self.sTB}, {self.sTB}, {t1}")
        k(f"s_and_b32 {self.sM}, {t0}, 1\ns_lshl_b32 {self.sM}, {self.sM}, 2\ns_and_b32 {self.t2}, {t1}, 3\ns_add_u32 {self.sM}, {self.sM}, {self.t2}")
        k(f"s_lshr_b32 {self.sJN}, {t1}, 2\ns_lshr_b32 {t0}, {t0}, 1")
        k(f"s_mul_i32 {self.sN1}, {t0}, 7\ns_min_u32 {t1}, {self.sJN}, 6\ns_add_u32 {self.sN1}, {self.sN1}, {t1}")
        k(f"s_lshl_b32 {self.sN2}, {t0}, 3\ns_add_u32 {self.sN2}, {self.sN2}, {self.sJN}")
        k(f"s_mul_i32 {self.sTBo}, {self.sTB}, {BS}")
        k("s_waitcnt lgkmcnt(0)")
        self.srd(self.rWS, self.PW, WS['END'])
        self.srd(self.rW1, self.pW1, S * F * 2)
        self.srd(self.rW2, self.pW2, S * F * 2)
        self.stamp('start')

    def init_bufs(self, names):
        k = self.k
        sent = k.v(4, 2)
        for i in range(4): k(f"v_mov_b32 {sent[i]}, -1")
        tok = None
        for nm in names:
            if nm[0] in 'HG':
                k(f"s_lshl_b32 {self.t0}, {self.sTB}, 13\ns_add_u32 {self.t0}, {self.t0}, {WS[nm]}")
            else:
                k(f"s_add_u32 {self.t0}, {self.sTBo}, {WS[nm]}")
            k(f"s_add_u32 {self.t1}, {self.t0}, 4096")
            self.vmem(f"buffer_store_dwordx4 {sent}, {self.vT16}, {self.rWS}, {self.t0} offen sc1")
            tok = self.vmem(f"buffer_store_dwordx4 {sent}, {self.vT16}, {self.rWS}, {self.t1} offen sc1")
        k("s_nop 0")
        k.v.free(sent)
        return tok

    def timeout_mark(self, code):
        pass

    def gather_issue(self, dst, voff, so0, so1):
        self.vmem(f"buffer_load_dwordx4 {dst[0:4]}, {voff}, {self.rWS}, {so0} offen sc1")
        return self.vmem(f"buffer_load_dwordx4 {dst[4:8]}, {voff}, {self.rWS}, {so1} offen sc1")
    def check8(self, d, t):
        k = self.k
        k(f"v_max3_u32 {t}, {d[0]}, {d[1]}, {d[2]}\nv_max3_u32 {t}, {t}, {d[3]}, {d[4]}\nv_max3_u32 {t}, {t}, {d[5]}, {d[6]}\nv_max_u32 {t}, {t}, {d[7]}")
        k(f"v_cmp_eq_u32 vcc, -1, {t}")
    def gather_wait(self, tok, dst, voff, so0, so1):
        k = self.k
        t = k.v()
        retry, ok = k.label('gretry'), k.label('gok')
        self.vm.wait(tok)
        self.check8(dst, t)
        k(f"s_cbranch_vccnz {retry}")
        k(f"{ok}:")
        save = k.lines; k.lines = []
        lp = k.label('glp'); fin = k.label('gfin')
        k(f"{retry}:\ns_mov_b32 {self.sSpin}, 0\n{lp}:\ns_mov_b64 exec, vcc")
        k(f"buffer_load_dwordx4 {dst[0:4]}, {voff}, {self.rWS}, {so0} offen sc1")
        k(f"buffer_load_dwordx4 {dst[4:8]}, {voff}, {self.rWS}, {so1} offen sc1")
        k("s_waitcnt vmcnt(0)")
        self.check8(dst, t)
        k(f"s_add_u32 {self.sSpin}, {self.sSpin}, 1\ns_cmp_ge_u32 {self.sSpin}, {SPIN_MAX}\ns_cbranch_scc1 {fin}")
        k(f"s_cbranch_vccnz {lp}")
        k(f"{fin}:\ns_mov_b64 exec, -1\ns_branch {ok}")
        self.ool += k.lines; k.lines = save
        k.v.free(t)

    def layernorm(self, x, double, redoff):
        k = self.k
        s = k.v(8, 2); q = k.v(8, 2); a = k.v()
        for i in range(0, 8, 2):
            k(f"v_pk_add_f32 {s[i:i+2]}, {x[i:i+2]}, {x[8+i:10+i]}")
            k(f"v_pk_mul_f32 {q[i:i+2]}, {x[i:i+2]}, {x[i:i+2]}")
        for i in range(0, 8, 2):
            k(f"v_pk_fma_f32 {q[i:i+2]}, {x[8+i:10+i]}, {x[8+i:10+i]}, {q[i:i+2]}")
        k(f"v_and_b32 {a}, 60, v0\nv_add_u32 {a}, {self.sW}, {a}\nv_lshlrev_b32 {a}, 2, {a}")
        for i in range(8): k(f"v_permlane32_swap_b32 {s[i]}, {q[i]}")
        for i in range(0, 8, 2): k(f"v_pk_add_f32 {s[i:i+2]}, {s[i:i+2]}, {q[i:i+2]}")
        for i in range(4): k(f"v_permlane16_swap_b32 {s[i]}, {s[i+4]}")
        for i in range(0, 4, 2): k(f"v_pk_add_f32 {s[i:i+2]}, {s[i:i+2]}, {s[i+4:i+6]}")
        for i in range(2):
            k(f"v_add_f32_dpp {q[i]}, {s[i]}, {s[i]} row_ror:8 row_mask:0xf bank_mask:0x3")
            k(f"v_add_f32_dpp {q[i]}, {s[i+2]}, {s[i+2]} row_ror:8 row_mask:0xf bank_mask:0xc")
        k(f"v_add_f32_dpp {s[0]}, {q[0]}, {q[0]} row_shl:4 row_mask:0xf bank_mask:0x5")
        k(f"v_add_f32_dpp {s[0]}, {q[1]}, {q[1]} row_shr:4 row_mask:0xf bank_mask:0xa")
        k(f"v_add_f32_dpp {s[0]}, {s[0]}, {s[0]} quad_perm:[1,0,3,2] row_mask:0xf bank_mask:0xf")
        k(f"v_add_f32_dpp {s[0]}, {s[0]}, {s[0]} quad_perm:[2,3,0,1] row_mask:0xf bank_mask:0xf")
        self.ds(f"ds_write_b32 {a}, {s[0]} offset:{redoff & 0xffff}") if redoff < 65536 else None
        if redoff >= 65536:
            k(f"v_add_u32 {a}, {redoff}, {a}")
            self.ds(f"ds_write_b32 {a}, {s[0]}")
        k(f"v_and_b32 {a}, 7, v0\nv_lshlrev_b32 {a}, 4, {a}\nv_add_u32 {a}, {redoff}, {a}")
        self.barrier()
        self.ds(f"ds_read_b128 {s[0:4]}, {a}")
        tk = self.ds(f"ds_read_b128 {q[0:4]}, {a} offset:128")
        self.lg.wait(tk)
        k(f"v_pk_add_f32 {s[0:2]}, {s[0:2]}, {s[2:4]}\nv_pk_add_f32 {q[0:2]}, {q[0:2]}, {q[2:4]}")
        k(f"v_add_f32 {s[0]}, {s[0]}, {s[1]}\nv_add_f32 {q[0]}, {q[0]}, {q[1]}")
        mean, var, r = s[0], q[0], s[1]
        k(f"v_mul_f32 {mean}, {f2h(1/512)}, {mean}\nv_mul_f32 {var}, {f2h(1/512)}, {var}")
        k(f"v_fma_f32 {var}, -{mean}, {mean}, {var}\nv_max_f32 {var}, 0, {var}")
        k(f"v_add_f32 {r}, {f2h(1e-5)}, {var}\nv_rsq_f32 {r}, {r}")
        if double:
            k(f"v_mul_f32 {var}, {var}, {r}\nv_fmaak_f32 {var}, {var}, {r}, {f2h(1e-5)}\nv_rsq_f32 {var}, {var}\nv_mul_f32 {r}, {r}, {var}")
        u = k.v(16, 2)
        for e in range(2):
            for i in range(8):
                k(f"v_subrev_f32_dpp {u[e*8+i]}, {mean}, {x[e*8+i]} row_newbcast:{i} row_mask:0xf bank_mask:0xf")
        for e in range(2):
            for i in range(8):
                k(f"v_mul_f32_dpp {u[e*8+i]}, {r}, {u[e*8+i]} row_newbcast:{i} row_mask:0xf bank_mask:0xf")
        k.v.free(s, q, a)
        return u
    def pack16(self, dst, src):
        for i in range(8): self.k(f"v_cvt_pk_bf16_f32 {dst[i]}, {src[2*i]}, {src[2*i+1]}")
    def unpack_add(self, x, p):
        k = self.k
        t = k.v(16, 2)
        for i in range(8):
            k(f"v_lshlrev_b32 {t[2*i]}, 16, {p[i]}\nv_and_b32 {t[2*i+1]}, 0xffff0000, {p[i]}")
        for i in range(8):
            k(f"v_pk_add_f32 {x[2*i:2*i+2]}, {x[2*i:2*i+2]}, {t[2*i:2*i+2]}")
        k.v.free(t)
    def unpack(self, x, p, n=8):
        for i in range(n):
            self.k(f"v_lshlrev_b32 {x[2*i]}, 16, {p[i]}\nv_and_b32 {x[2*i+1]}, 0xffff0000, {p[i]}")
    def publish_blk(self, p, buf):
        k = self.k
        k(f"s_add_u32 {self.t0}, {self.sTBo}, {WS[buf]}\ns_add_u32 {self.t1}, {self.t0}, 4096")
        self.vmem(f"buffer_store_dwordx4 {p[0:4]}, {self.vT16}, {self.rWS}, {self.t0} offen sc1")
        return self.vmem(f"buffer_store_dwordx4 {p[4:8]}, {self.vT16}, {self.rWS}, {self.t1} offen sc1")
    def load_dskip(self):
        k = self.k
        dsk = k.v(2, 2); a = k.v()
        k(f"v_mov_b32 {dsk[0]}, 0\nv_mov_b32 {dsk[1]}, 0\nv_lshlrev_b32 {a}, 1, v0")
        self.vmem(f"global_load_short_d16_hi {dsk[0]}, {a}, {self.pDS}")
        tok = self.vmem(f"global_load_short_d16_hi {dsk[1]}, {a}, {self.pDS} offset:512")
        k.v.free(a)
        return dsk, tok
    def ln_to_conv(self, x, dsk, dtok, ubuf, redoff):
        k = self.k
        u = self.layernorm(x, False, redoff)
        p = k.v(8, 2)
        self.pack16(p, u)
        tok = self.publish_blk(p, ubuf)
        self.vm.wait(dtok)
        for e in range(2):
            for i in range(8): k(f"v_fmac_f32 {x[e*8+i]}, {dsk[e]}, {u[e*8+i]}")
        k.v.free(u, p, dsk)
        return tok

    def w_setup(self):
        k = self.k
        self.wV1 = k.v(); self.wV2 = k.v()
        self.ta = k.v(2, 2)
        self.sWK = k.s(); self.sWB = k.s(); self.sWM = k.s(); self.sRot1 = k.s(); self.sRot2 = k.s()
        a, b, c = k.v(), k.v(), k.v()
        self.lane(a)
        k(f"v_lshrrev_b32 {b}, 3, {a}\nv_lshrrev_b32 {c}, 2, {a}\nv_and_b32 {c}, 4, {c}\nv_and_b32 {self.wV1}, 7, {a}\nv_xor_b32 {c}, {c}, {self.wV1}")
        k(f"s_lshr_b32 {self.t0}, {self.sW}, 1\ns_lshl_b32 {self.t0}, {self.t0}, 2\nv_xor_b32 {c}, {self.t0}, {c}\nv_lshlrev_b32 {c}, 4, {c}")
        k(f"v_mul_u32_u24 {self.wV1}, {F*2}, {b}\nv_add_u32 {self.wV1}, {self.wV1}, {c}\nv_lshl_add_u32 {self.wV2}, {b}, 12, {c}")
        t = self.ta[0]
        k(f"v_lshrrev_b32 {b}, 5, {a}\nv_lshlrev_b32 {t}, 10, {b}")
        k(f"v_bfe_u32 {b}, {a}, 2, 2\nv_lshl_add_u32 {t}, {b}, 7, {t}")
        k(f"v_bfe_u32 {b}, {a}, 3, 1\nv_lshl_add_u32 {t}, {b}, 6, {t}")
        k(f"v_bfe_u32 {b}, {a}, 4, 1\nv_lshl_add_u32 {t}, {b}, 5, {t}")
        k(f"v_bfe_u32 {b}, {a}, 0, 1\nv_lshl_add_u32 {t}, {b}, 4, {t}")
        k(f"v_bfe_u32 {b}, {a}, 1, 1\nv_lshl_add_u32 {t}, {b}, 3, {t}")
        k(f"s_mul_i32 {self.sWM}, {self.sW}, {WREG}\nv_add_u32 {t}, {self.sWM}, {t}\nv_xor_b32 {self.ta[1]}, 64, {t}")
        k.v.free(a, b, c)
        r1m, r1n, r2m, r2n = self.o.get('rot', (4, 4, 4, 4))
        k(f"s_mul_i32 {self.t0}, {self.sM}, {r1m}\ns_mul_i32 {self.t1}, {self.sJN}, {r1n}\ns_add_u32 {self.t0}, {self.t0}, {self.t1}\ns_and_b32 {self.sRot1}, {self.t0}, 31")
        k(f"s_mul_i32 {self.t0}, {self.sM}, {r2m}\ns_mul_i32 {self.t1}, {self.sJN}, {r2n}\ns_add_u32 {self.sRot2}, {self.t0}, {self.t1}")
        for _ in range((7 * (r2m + r2n)) // 28):
            k(f"s_sub_u32 {self.t0}, {self.sRot2}, 28\ns_cmp_ge_u32 {self.sRot2}, 28\ns_cselect_b32 {self.sRot2}, {self.t0}, {self.sRot2}")
        self.w_issued = 0; self.w_drained = 0; self.w_tok = {}
    def w_item(self, i):
        if i < 32: return 1, i
        if i < 46: return 2, (i - 32) * 2
        return 2, (i - 46) * 2 + 1
    def w_slot(self, i):
        return self.slot_of[i]
    def w_issue(self, n):
        k = self.k
        for i in range(self.w_issued, self.w_issued + n):
            mat, st = self.w_item(i)
            sl = self.w_slot(i)
            prev = [j for j in range(i) if self.slot_of[j] == sl]
            assert not prev or prev[-1] < self.w_drained, (i, prev, self.w_drained)
            if prev: self.lg.wait(self.w_rtok[prev[-1]])
            t0, t1 = self.t0, self.t1
            if mat == 1:
                k(f"s_add_u32 {t0}, {self.sRot1}, {st}\ns_and_b32 {t0}, {t0}, 31\ns_lshl_b32 {t1}, {self.sW}, 5\ns_add_u32 {t0}, {t0}, {t1}")
                k(f"s_mul_i32 {t0}, {t0}, {16*F*2}\ns_lshl_b32 {t1}, {self.sN1}, 7\ns_add_u32 {t0}, {t0}, {t1}\ns_add_u32 {t1}, {t0}, {8*F*2-1024}")
                srd, vo = self.rW1, self.wV1
            else:
                k(f"s_add_u32 {t0}, {self.sRot2}, {st}\ns_sub_u32 {t1}, {t0}, 28\ns_cmp_ge_u32 {t0}, 28\ns_cselect_b32 {t0}, {t1}, {t0}\ns_mul_i32 {t1}, {self.sW}, 28\ns_add_u32 {t0}, {t0}, {t1}")
                k(f"s_lshl_b32 {t0}, {t0}, 16\ns_lshl_b32 {t1}, {self.sN2}, 7\ns_add_u32 {t0}, {t0}, {t1}\ns_add_u32 {t1}, {t0}, {8*4096-1024}")
                srd, vo = self.rW2, self.wV2
            k(f"s_add_u32 m0, {self.sWM}, {sl*2048}")
            self.vmem(f"buffer_load_dwordx4 {vo}, {srd}, {t0} offen lds")
            self.w_tok[i] = self.vmem(f"buffer_load_dwordx4 {vo}, {srd}, {t1} offen offset:1024 lds")
        self.w_issued += n
    def w_read(self, dst, sl):
        tk = None
        for ni in range(2):
            for u in range(2):
                tk = self.ds(f"ds_read_b64_tr_b16 {dst[ni*4+u*2:ni*4+u*2+2]}, {self.ta[ni]} offset:{sl*2048+u*512}")
        return tk
    def w_drain(self, n):
        for i in range(self.w_drained, self.w_drained + n):
            assert i < self.w_issued and i < 46
            self.vm.wait(self.w_tok[i])
            dst = self.W1A[i*8:i*8+8] if i < 32 else self.W2V[(i-32)*8:(i-32)*8+8]
            self.w_rtok[i] = self.w_read(dst, self.w_slot(i))
        self.w_drained += n

    def kgen_load(self):
        k = self.k
        self.kp = k.v(5, 2); a = k.v(); b = k.v()
        for i in range(5): k(f"v_mov_b32 {self.kp[i]}, 0")
        k(f"s_lshl_b32 {self.t0}, {self.sTB}, 9\nv_lshl_add_u32 {a}, v0, 1, {self.t0}")
        k(f"s_lshl_b32 {self.t0}, {self.sTB}, 2\nv_lshrrev_b32 {b}, 7, v0\nv_lshl_add_u32 {b}, {b}, 1, {self.t0}")
        for i, p in enumerate([self.pLA, self.pAI, self.pCR, self.pCI]):
            self.vmem(f"global_load_short_d16_hi {self.kp[i]}, {a}, {p}")
        self.kp_tok = self.vmem(f"global_load_short_d16_hi {self.kp[4]}, {b}, {self.pDT}")
        k.v.free(a, b)
    def cmul(self, d, a, b):
        self.k(f"v_pk_mul_f32 {d}, {a}, {b} op_sel_hi:[1,0]")
        self.k(f"v_pk_fma_f32 {d}, {a}, {b}, {d} op_sel:[1,1,0] op_sel_hi:[0,1,1] neg_lo:[0,1,0]")
    def xrow_off(self, r):
        return r * TROW + ((WREG - 14 * TROW) if r >= 14 else 0)
    def kgen_tables(self):
        k = self.k
        la, ai, cr, ci, dt = [self.kp[i] for i in range(5)]
        ay = k.v(); ax = k.v(); t = k.v(2, 2)
        k(f"v_and_b32 {t[0]}, 127, v0\nv_lshlrev_b32 {t[0]}, 2, {t[0]}\nv_lshrrev_b32 {t[1]}, 7, v0")
        k(f"v_mul_u32_u24 {ay}, {32*TROW}, {t[1]}\nv_add_u32 {ay}, {ay}, {t[0]}\nv_add_u32 {ay}, {SB}, {ay}")
        k(f"v_mul_u32_u24 {ax}, {2*WREG}, {t[1]}\nv_add_u32 {ax}, {ax}, {t[0]}\nv_add_u32 {ax}, {10*2048}, {ax}")
        self.vm.wait(self.kp_tok)
        k(f"v_mul_f32 {la}, {f2h(LOG2E)}, {la}\nv_mul_f32 {dt}, {f2h(LOG2E)}, {dt}\nv_exp_f32 {la}, {la}\nv_exp_f32 {dt}, {dt}")
        k(f"v_cvt_pk_bf16_f32 {t[0]}, {la}, {dt}\nv_lshlrev_b32 {la}, 16, {t[0]}\nv_and_b32 {dt}, 0xffff0000, {t[0]}")
        k(f"v_mul_f32 {la}, {la}, {dt}\nv_mul_f32 {ai}, {ai}, {dt}\nv_add_f32 {dt}, {dt}, {dt}")
        k(f"v_mul_f32 {la}, {f2h(-LOG2E)}, {la}\nv_mul_f32 {ai}, {f2h(1/(2*math.pi))}, {ai}")
        b = [k.v(2, 2) for _ in range(9)]
        k(f"v_mul_f32 {b[0][0]}, {cr}, {dt}\nv_mul_f32 {b[0][1]}, {ci}, {dt}")
        def pw(d, p):
            k(f"v_mul_f32 {t[0]}, {f2h(float(p))}, {la}\nv_mul_f32 {t[1]}, {f2h(float(p))}, {ai}\nv_exp_f32 {t[0]}, {t[0]}\nv_fract_f32 {t[1]}, {t[1]}")
            k(f"v_cos_f32 {d[0]}, {t[1]}\nv_sin_f32 {d[1]}, {t[1]}\nv_pk_mul_f32 {d}, {d}, {t} op_sel_hi:[1,0]")
        z1, z8, z256, z128 = k.v(2, 2), k.v(2, 2), k.v(2, 2), k.v(2, 2)
        pw(z1, 1); pw(z8, 8); pw(z256, 256); pw(z128, 128)
        pk = [k.v() for _ in range(3)]
        cnt = [0]
        def wx(row, v):
            p = pk[cnt[0] % 3]; cnt[0] += 1
            k(f"v_cvt_pk_bf16_f32 {p}, {v[0]}, -{v[1]}")
            self.ds(f"ds_write_b32 {ax}, {p} offset:{self.xrow_off(row)}")
        def wy(row, v):
            p = pk[cnt[0] % 3]; cnt[0] += 1
            k(f"v_cvt_pk_bf16_f32 {p}, {v[0]}, {v[1]}")
            self.ds(f"ds_write_b32 {ay}, {p} offset:{row*TROW}")
        def chainY(row0, start):
            cur = start; alt = [k.v(2, 2), k.v(2, 2)]
            for r in range(16):
                if r == 0 and row0 == 0:
                    p = pk[cnt[0] % 3]; cnt[0] += 1
                    k(f"v_mov_b32 {p}, 0x3f80")
                    self.ds(f"ds_write_b32 {ay}, {p}")
                elif r == 0 or (r == 1 and row0 == 0):
                    wy(row0 + r, cur)
                else:
                    nx = alt[r & 1]
                    self.cmul(nx, cur, z8); cur = nx
                    wy(row0 + r, cur)
                yield
            k.v.free(*alt)
        def chainX():
            wx(0, b[0]); yield
            for r in range(1, 9):
                self.cmul(b[r], b[r-1], z1)
                if r < 8: wx(r, b[r])
                yield
            cur = {}
            dst = {0: b[1], 2: b[3], 4: b[5], 6: b[3], 8: b[7]}
            for i, r in enumerate([0, 2, 4, 6, 8]):
                self.cmul(dst[r], b[r], z256); wx(8 + i, dst[r]); yield
            A = {0: b[1], 4: b[5], 8: b[7]}; B = {0: b[0], 4: b[4], 8: b[8]}
            row = 13
            for lvl in range(2):
                for r in (0, 4, 8):
                    self.cmul(B[r], A[r], z256); wx(row, B[r]); row += 1; yield
                A, B = B, A
            for lvl in range(4):
                for r in (0, 8):
                    self.cmul(B[r], A[r], z256); wx(row, B[r]); row += 1; yield
                A, B = B, A
            assert row == 27
        gens = [chainX(), chainY(0, z8), chainX, chainY(16, z128)]
        gx = gens[0]; order = [gx, gens[1], gx, gens[3]]
        alive = set(id(g) for g in order)
        while alive:
            for g in order:
                if id(g) in alive:
                    try: next(g)
                    except StopIteration: alive.discard(id(g))
        k.v.free(ay, ax, t, z1, z8, z256, z128, self.kp, *b, *pk)
    def zero_pads(self):
        k = self.k
        z = k.v(4, 2); a = k.v(); b = k.v()
        for i in range(4): k(f"v_mov_b32 {z[i]}, 0")
        lab = k.label('zp')
        self.lane(a)
        k(f"v_lshrrev_b32 {b}, 5, {a}\nv_mul_u32_u24 {b}, {UCS}, {b}\nv_and_b32 {a}, 31, {a}\nv_lshl_add_u32 {b}, {a}, 4, {b}\nv_add_u32 {b}, {UB}, {b}")
        self.ds(f"ds_write_b128 {b}, {z}")
        k.v.free(z, a, b)
    def zero_ktails(self):
        k = self.k
        z = k.v(4, 2); a = k.v(); b = k.v()
        for i in range(4): k(f"v_mov_b32 {z[i]}, 0")
        k(f"v_bfe_u32 {b}, v0, 2, 3\nv_mul_u32_u24 {b}, {KCS}, {b}\nv_and_b32 {a}, 3, v0\nv_lshl_add_u32 {b}, {a}, 4, {b}\nv_add_u32 {b}, {SB + 4096}, {b}")
        self.ds(f"ds_write_b128 {b}, {z}")
        k.v.free(z, a, b)
    def kgen_mfma(self):
        k = self.k
        l = k.v(); aa = k.v(); ab = k.v(); t = k.v(); c = k.v(); base = k.v()
        self.lane(l)
        k(f"s_lshr_b32 {self.t0}, {self.sW}, 1\ns_and_b32 {self.t1}, {self.sW}, 1")
        k(f"v_and_b32 {t}, 31, {l}\nv_mul_u32_u24 {ab}, {TROW}, {t}\nv_lshrrev_b32 {t}, 5, {l}\nv_lshl_add_u32 {ab}, {t}, 4, {ab}")
        k(f"s_mul_i32 {self.t2}, {self.t0}, {32*TROW}\ns_add_u32 {self.t2}, {self.t2}, {SB}\nv_add_u32 {ab}, {self.t2}, {ab}")
        k(f"v_bfe_u32 {c}, {l}, 4, 1\nv_bfe_u32 {t}, {l}, 2, 1\nv_lshl_add_u32 {c}, {c}, 1, {t}\ns_lshl_b32 {self.t2}, {self.t1}, 2\nv_add_u32 {c}, {self.t2}, {c}")
        consts = [(0x76543210, 0), (0x43222100, 8), (0x22111000, 13), (0x22111000, 16)]
        k(f"v_mov_b32 {aa}, 0x11100000\nv_lshl_add_u32 {base}, {c}, 1, 11")
        for ch_, (cv, bs) in enumerate(consts):
            k(f"v_cmp_eq_u32 vcc, {ch_}, {c}\nv_mov_b32 {t}, {hex(cv)}\nv_cndmask_b32 {aa}, {aa}, {t}, vcc\nv_mov_b32 {t}, {bs}\nv_cndmask_b32 {base}, {base}, {t}, vcc")
        k(f"v_bfe_u32 {t}, {l}, 3, 1\nv_and_b32 {c}, 3, {l}\nv_lshl_add_u32 {t}, {t}, 2, {c}\nv_lshlrev_b32 {t}, 2, {t}")
        k(f"v_bfe_u32 {aa}, {aa}, {t}, 4\nv_add_u32 {base}, {base}, {aa}")
        k(f"v_mul_u32_u24 {aa}, {TROW}, {base}\nv_cmp_le_u32 vcc, 14, {base}\nv_add_u32 {t}, {WREG - 14*TROW}, {aa}\nv_cndmask_b32 {aa}, {aa}, {t}, vcc")
        k(f"v_lshrrev_b32 {t}, 5, {l}\nv_lshl_add_u32 {aa}, {t}, 4, {aa}\ns_mul_i32 {self.t2}, {self.t0}, {2*WREG}\ns_add_u32 {self.t2}, {self.t2}, {10*2048}\nv_add_u32 {aa}, {self.t2}, {aa}")
        k(f"v_and_b32 {c}, 31, {l}\nv_lshlrev_b32 {c}, 4, {c}\nv_lshl_add_u32 {c}, {t}, 9, {c}")
        k(f"s_mul_i32 {self.t2}, {self.t0}, {KCH}\ns_lshl_b32 {self.t3}, {self.t1}, 11\ns_sub_u32 {self.t2}, {self.t2}, {self.t3}\ns_add_u32 {self.t2}, {self.t2}, {SB + 4080 - 1024}")
        k(f"v_sub_u32 {c}, {self.t2}, {c}")
        k(f"v_and_b32 {t}, {self.t1}, {l}")
        self.barrier()
        acc = k.v(16, 2)
        NB = 4
        fa = [k.v(4, 2) for _ in range(NB)]; fb = [k.v(4, 2) for _ in range(NB)]
        tok = {}
        def ld(s):
            self.ds(f"ds_read_b128 {fa[s % NB]}, {aa} offset:{s*32}")
            tok[s] = self.ds(f"ds_read_b128 {fb[s % NB]}, {ab} offset:{s*32}")
        for s in range(NB): ld(s)
        for s in range(16):
            self.lg.wait(tok[s])
            k(f"v_mfma_f32_32x32x16_bf16 {acc}, {fa[s % NB]}, {fb[s % NB]}, {0 if s == 0 else acc}")
            if s + NB < 16: ld(s + NB)
        k(f"v_cmp_ne_u32 vcc, 0, {t}")
        self.barrier()
        self.zero_ktails()
        for g in range(2):
            k(f"v_cndmask_b32 {acc[g*8+4]}, {acc[g*8+4]}, {acc[g*8+5]}, vcc")
            for i in range(4):
                k(f"v_cvt_pk_bf16_f32 {fa[g][i]}, {acc[g*8+7-2*i]}, {acc[g*8+6-2*i]}")
            self.ds(f"ds_write_b128 {c}, {fa[g]} offset:{1024 - g*1024}")
        k.v.free(l, aa, ab, t, c, base, acc, *fa, *fb)
        ad = k.v()
        k(f"v_add_u32 {ad}, {SB}, {self.vT16}")
        k(f"s_lshl_b32 {self.t0}, {self.sTB}, 15\ns_add_u32 {self.t0}, {self.t0}, {WS['KI']}")
        self.barrier()
        w = [k.v(6, 2) for _ in range(2)]
        tk = []
        for ch in range(2):
            self.ds(f"ds_read_b128 {w[ch][0:4]}, {ad} offset:{ch*KCH}")
            tk.append(self.ds(f"ds_read_b64 {w[ch][4:6]}, {ad} offset:{ch*KCH+16}"))
        o = [[k.v(4, 2) for _ in range(3)] for _ in range(2)]
        for ch in range(2):
            self.lg.wait(tk[ch])
            for i in range(4): k(f"v_alignbit_b32 {o[ch][0][i]}, {w[ch][i+1]}, {w[ch][i]}, 16")
            self.ds(f"ds_write_b128 {ad}, {o[ch][0]} offset:{ch*KCH+KCS}")
            for i in range(4): k(f"v_mov_b32 {o[ch][1][i]}, {w[ch][i+1]}")
            self.ds(f"ds_write_b128 {ad}, {o[ch][1]} offset:{ch*KCH+2*KCS}")
            for i in range(4): k(f"v_alignbit_b32 {o[ch][2][i]}, {w[ch][i+2]}, {w[ch][i+1]}, 16")
            self.ds(f"ds_write_b128 {ad}, {o[ch][2]} offset:{ch*KCH+3*KCS}")
        self.kimg = (w, o, ad)
    def kimg_save(self):
        k = self.k
        w, o, ad = self.kimg
        k(f"s_lshl_b32 {self.t0}, {self.sTB}, 15\ns_add_u32 {self.t0}, {self.t0}, {WS['KI']}")
        for ch in range(2):
            for cpy in range(4):
                src = w[ch][0:4] if cpy == 0 else o[ch][cpy-1]
                self.vmem(f"buffer_store_dwordx4 {src}, {self.vT16}, {self.rWS}, {self.t0} offen")
                k(f"s_add_u32 {self.t0}, {self.t0}, 4096")
        k("s_nop 0")
        k.v.free(ad, *w, *o[0], *o[1])
    def kimg_load(self):
        k = self.k
        k(f"s_lshl_b32 {self.t0}, {self.sTB}, 15\ns_add_u32 {self.t0}, {self.t0}, {WS['KI']}\ns_lshl_b32 {self.t1}, {self.sW}, 10\ns_add_u32 {self.t1}, {self.t1}, {SB}")
        tok = None
        for i in range(8):
            k(f"s_add_u32 m0, {self.t1}, {i*KCS}")
            tok = self.vmem(f"buffer_load_dwordx4 {self.vT16}, {self.rWS}, {self.t0} offen sc1 lds")
            if i < 7: k(f"s_add_u32 {self.t0}, {self.t0}, 4096")
        return tok

    def conv_gather_issue(self, ubuf):
        k = self.k
        self.cg = k.v(8, 2); self.cgo = k.v(); self.cgs = k.s(2)
        t = k.v()
        k(f"v_lshrrev_b32 {t}, 1, v0\nv_mul_u32_u24 {self.cgo}, {BS}, {t}\nv_and_b32 {t}, 1, v0\nv_lshl_add_u32 {self.cgo}, {t}, 4, {self.cgo}")
        k(f"s_lshl_b32 {self.cgs[0]}, {self.sTB}, 5\ns_add_u32 {self.cgs[0]}, {self.cgs[0]}, {WS[ubuf]}\ns_add_u32 {self.cgs[1]}, {self.cgs[0]}, {128*BS}")
        k.v.free(t)
        self.cg_tok = self.gather_issue(self.cg, self.cgo, self.cgs[0], self.cgs[1])
    def conv(self, ybuf, L, ktok=None):
        k = self.k
        l = k.v(); aa = k.v(); ab = k.v(); t = k.v(); c = k.v(); uw = k.v()
        self.lane(l)
        k(f"s_lshr_b32 {self.t0}, {self.sW}, 1\ns_and_b32 {self.t1}, {self.sW}, 1\ns_lshl_b32 {self.t1}, {self.t1}, 8")
        k(f"v_and_b32 {t}, 1, v0\nv_mul_u32_u24 {uw}, {UCS}, {t}\nv_lshrrev_b32 {t}, 1, v0\nv_lshl_add_u32 {uw}, {t}, 4, {uw}\nv_add_u32 {uw}, {UB + 512}, {uw}")
        k(f"v_not_b32 {c}, {l}\nv_and_b32 {t}, 12, {c}\nv_and_b32 {c}, 3, {c}")
        k(f"v_mul_u32_u24 {aa}, {KCS}, {c}\nv_lshl_add_u32 {aa}, {t}, 1, {aa}\nv_lshrrev_b32 {t}, 4, {l}\nv_lshl_add_u32 {aa}, {t}, 4, {aa}")
        k(f"s_mul_i32 {self.t2}, {self.t0}, {KCH}\ns_add_u32 {self.t2}, {self.t2}, {SB + 256}\ns_sub_u32 {self.t2}, {self.t2}, {self.t1}\nv_add_u32 {aa}, {self.t2}, {aa}")
        k(f"v_and_b32 {c}, 15, {l}\nv_lshlrev_b32 {ab}, 5, {c}\nv_lshl_add_u32 {ab}, {t}, 4, {ab}")
        k(f"s_mul_i32 {self.t2}, {self.t0}, {UCS}\ns_add_u32 {self.t2}, {self.t2}, {UB + 288}\ns_sub_u32 {self.t2}, {self.t2}, {self.t1}\nv_add_u32 {ab}, {self.t2}, {ab}")
        pw_ = l
        k(f"v_lshrrev_b32 {t}, 5, {l}\nv_xor_b32 {pw_}, {t}, {l}\nv_lshlrev_b32 {pw_}, 4, {pw_}\ns_mul_i32 {self.t2}, {self.sW}, {PS}\ns_add_u32 {self.t2}, {self.t2}, {SB}\nv_add_u32 {pw_}, {self.t2}, {pw_}")
        pr = c
        k(f"v_bfe_u32 {pr}, v0, 2, 4\nv_bfe_u32 {t}, v0, 1, 1\nv_xor_b32 {pr}, {pr}, {t}\nv_lshlrev_b32 {pr}, 4, {pr}\nv_lshl_add_u32 {pr}, {t}, 9, {pr}")
        k(f"v_and_b32 {t}, 1, v0\nv_mul_u32_u24 {t}, {2*PS}, {t}\nv_add_u32 {pr}, {pr}, {t}\ns_lshl_b32 {self.t2}, {self.sW}, 10\ns_add_u32 {self.t2}, {self.t2}, {SB}\nv_add_u32 {pr}, {self.t2}, {pr}")
        k.v.free(t)
        self.gather_wait(self.cg_tok, self.cg, self.cgo, self.cgs[0], self.cgs[1])
        self.stamp(f'c{L}_got')
        self.ds(f"ds_write_b128 {uw}, {self.cg[0:4]}")
        self.ds(f"ds_write_b128 {uw}, {self.cg[4:8]} offset:2048")
        if ktok is not None: self.vm.wait(ktok)
        self.barrier()
        k.v.free(self.cg, self.cgo, uw); k.s.free(self.cgs)
        self.hook(f'c{L}_main')
        acc = k.v(32, 2)
        NP = self.o.get('conv_pairs', 9)
        pool = [(k.v(4, 2), k.v(4, 2)) for _ in range(NP)]
        seq = [(it, J, C) for it in range(4) for J in range(8) for C in range(J + 1)]
        freeA = [p[0] for p in pool]; freeB = [p[1] for p in pool]
        order = [(it, i) for it in range(4) for i in range(8)]
        nA = nB = 0
        RA, RB, TA, TB = {}, {}, {}, {}
        def tryA():
            nonlocal nA
            if nA < 32 and freeA:
                it, C = order[nA]; r = freeA.pop(0); RA[it, C] = r
                off = 64 * (59 - 8*C - it)
                self.ds(f"ds_read_b64 {r[0:2]}, {aa} offset:{off}")
                TA[it, C] = self.ds(f"ds_read_b64 {r[2:4]}, {aa} offset:{off+8}")
                nA += 1; return True
            return False
        def tryB():
            nonlocal nB
            if nB < 32 and freeB:
                it, E = order[nB]; r = freeB.pop(0); RB[it, E] = r
                TB[it, E] = self.ds(f"ds_read_b128 {r}, {ab} offset:{512*E + 64*(3-it)}")
                nB += 1; return True
            return False
        for _ in range(3): tryB(); tryA()
        flip = 0
        for n, (it, J, C) in enumerate(seq):
            E = J - C
            while (it, C) not in RA: assert tryA()
            while (it, E) not in RB: assert tryB()
            self.lg.wait(max(TA[it, C], TB[it, E]))
            a4 = acc[J*4:J*4+4]
            first = (it == 0 and C == 0)
            k(f"v_mfma_f32_16x16x32_bf16 {a4}, {RA[it, C]}, {RB[it, E]}, {0 if first else a4}")
            if J == 7:
                freeA.append(RA[it, C]); freeB.append(RB[it, E])
            if nA <= nB: tryA() or tryB()
            else: tryB() or tryA()
        self.stamp(f'c{L}_mfma')
        self.hook(f'c{L}_prebar')
        self.barrier()
        for J in range(8):
            self.ds(f"ds_write_b128 {pw_}, {acc[J*4:J*4+4]} offset:{J*1024}")
        for p in pool: k.v.free(*p)
        self.barrier()
        r = k.v(32, 2); tk = []
        for i in range(2):
            for hf in range(2):
                for e in range(2):
                    t_ = self.ds(f"ds_read_b128 {r[i*16+hf*8+e*4:i*16+hf*8+e*4+4]}, {pr} offset:{i*4096 + hf*PS + e*256}")
            tk.append(t_)
        p = acc[0:8]
        for i in range(2):
            self.lg.wait(tk[i])
            for e in range(0, 8, 2):
                k(f"v_pk_add_f32 {r[i*16+e:i*16+e+2]}, {r[i*16+e:i*16+e+2]}, {r[i*16+8+e:i*16+10+e]}")
            for e in range(4):
                k(f"v_cvt_pk_bf16_f32 {p[i*4+e]}, {r[i*16+2*e]}, {r[i*16+2*e+1]}")
        self.hook(f'c{L}_prepub')
        tok = self.publish_blk(p, ybuf)
        k("s_nop 0")
        k.v.free(r, acc, l, aa, ab, c)
        return tok

    def phase_L(self, x, ptok, L):
        k = self.k
        g = k.v(8, 2); vo = k.v(); so = k.s(2); t = k.v(); ho = k.v()
        k(f"v_lshrrev_b32 {t}, 1, v0\nv_mul_u32_u24 {vo}, {BS}, {t}\nv_and_b32 {t}, 1, v0\nv_lshl_add_u32 {vo}, {t}, 4, {vo}")
        k(f"s_lshl_b32 {so[0]}, {self.sTB}, 5\ns_add_u32 {so[0]}, {so[0]}, {WS['Y%d' % L]}\ns_add_u32 {so[1]}, {so[0]}, {128*BS}")
        k(f"v_bfe_u32 {t}, v0, 5, 1\nv_and_b32 {ho}, 31, v0\nv_lshlrev_b32 {ho}, 4, {ho}\nv_lshl_add_u32 {ho}, {t}, 10, {ho}")
        k.v.free(t)
        self.hook(f'l{L}_pre')
        self.vm.wait(ptok)
        tok = self.gather_issue(g, vo, so[0], so[1])
        self.hook(f'l{L}_post')
        self.gather_wait(tok, g, vo, so[0], so[1])
        self.stamp(f'l{L}_got')
        self.unpack_add(x, g)
        u = self.layernorm(x, True, RED + 256)
        self.pack16(g, u)
        k(f"s_lshr_b32 {self.t0}, {self.sTB}, 1\ns_lshl_b32 {self.t0}, {self.t0}, 11\ns_and_b32 {self.t1}, {self.sTB}, 1\ns_lshl_b32 {self.t1}, {self.t1}, 9\ns_add_u32 {self.t0}, {self.t0}, {self.t1}")
        k(f"s_lshl_b32 {self.t1}, {self.sW}, 18\ns_add_u32 {self.t0}, {self.t0}, {self.t1}\ns_add_u32 {self.t0}, {self.t0}, {WS['H%d' % L]}\ns_add_u32 {self.t1}, {self.t0}, {4*HS}")
        self.hook(f'l{L}_prepub')
        self.vmem(f"buffer_store_dwordx4 {g[0:4]}, {ho}, {self.rWS}, {self.t0} offen sc1")
        tok = self.vmem(f"buffer_store_dwordx4 {g[4:8]}, {ho}, {self.rWS}, {self.t1} offen sc1")
        self.pack16(self.XP, x)
        if L == 2: tok = self.publish_blk(self.XP, 'X3')
        k.v.free(g, vo, ho, u, x); k.s.free(so)
        return tok

    def gemm(self, which, L, ptok):
        k = self.k
        final = (which == 2 and L == 2)
        steps = 32 if which == 1 else 28
        NS = self.o.get('ns1', 7) if which == 1 else self.o.get('ns2', 6)
        acc = k.v(64, 2)
        buf = [k.v(8, 2) for _ in range(NS)]
        wl = k.v(8, 2) if which == 2 else None
        vo = k.v(2, 2); t = k.v()
        so = [k.s() for _ in range(NS)]; sbase = k.s(); skk = k.s()
        src = ('H%d' if which == 1 else 'GA%d') % L
        mstr = HS if which == 1 else GS
        skip = k.label('g1skip')
        l = vo[1]
        self.lane(l)
        sN = self.sN1 if which == 1 else self.sN2
        pb = self.pB1 if which == 1 else self.pB2
        k(f"s_lshr_b32 {self.t0}, {self.sW}, 1\ns_lshl_b32 {self.t0}, {self.t0}, 6\ns_lshl_b32 {self.t1}, {sN}, 7\ns_add_u32 {self.t0}, {self.t0}, {self.t1}")
        if not final:
            k(f"v_lshrrev_b32 {t}, 5, {l}\nv_lshl_add_u32 {t}, {t}, 4, {self.t0}")
            self.vmem(f"global_load_dwordx4 {buf[NS-1][0:4]}, {t}, {pb}")
            btok = self.vmem(f"global_load_dwordx4 {buf[NS-1][4:8]}, {t}, {pb} offset:32")
        else:
            tk_ = buf[0][0]; xo = buf[0][1]; bb = buf[0][2]; tmp = buf[0][3]
            k(f"v_and_b32 {tk_}, 19, {l}\nv_bfe_u32 {tmp}, {l}, 2, 1\nv_lshl_add_u32 {tk_}, {tmp}, 3, {tk_}\nv_bfe_u32 {tmp}, {l}, 3, 1\nv_lshl_add_u32 {tk_}, {tmp}, 2, {tk_}")
            k(f"v_lshl_add_u32 {t}, {tk_}, 1, {self.t0}\nv_mov_b32 {bb}, 0")
            self.vmem(f"global_load_short_d16_hi {bb}, {t}, {pb}")
            k(f"v_lshrrev_b32 {tmp}, 4, {t}\nv_mul_u32_u24 {xo}, {BS}, {tmp}\nv_and_b32 {tmp}, 14, {t}\nv_add_u32 {xo}, {xo}, {tmp}\nv_lshrrev_b32 {tmp}, 5, {l}\nv_lshl_add_u32 {xo}, {tmp}, 6, {xo}")
            k(f"s_and_b32 {self.t1}, {self.sW}, 1\ns_lshl_b32 {self.t1}, {self.t1}, 9\ns_lshl_b32 {self.t2}, {self.sM}, 10\ns_add_u32 {self.t1}, {self.t1}, {self.t2}\ns_add_u32 {self.t1}, {self.t1}, {WS['X3']}")
            self.vOut = k.v()
            k(f"v_lshlrev_b32 {self.vOut}, 9, {t}\nv_lshl_add_u32 {self.vOut}, {tmp}, 4, {self.vOut}")
            lp, fin = k.label('x3lp'), k.label('x3ok')
            k(f"s_mov_b32 {self.sSpin}, 0\n{lp}:")
            for i in range(16): k(f"v_mov_b32 {acc[i]}, 0")
            for q in range(4):
                for r in range(4):
                    self.vmem(f"buffer_load_short_d16_hi {acc[q*4+r]}, {xo}, {self.rWS}, {self.t1} offen offset:{(8*q+r)*16} sc1")
            self.vm.wait_all()
            k(f"v_max3_u32 {tmp}, {acc[0]}, {acc[1]}, {acc[2]}")
            for i in range(3, 15, 2): k(f"v_max3_u32 {tmp}, {tmp}, {acc[i]}, {acc[i+1]}")
            k(f"v_max_u32 {tmp}, {tmp}, {acc[15]}\nv_cmp_eq_u32 vcc, 0xffff0000, {tmp}")
            k(f"s_add_u32 {self.sSpin}, {self.sSpin}, 1\ns_cmp_ge_u32 {self.sSpin}, {SPIN_MAX}\ns_cbranch_scc1 {fin}\ns_cbranch_vccnz {lp}\n{fin}:")
            for i in range(16): k(f"v_add_f32 {acc[i]}, {acc[i]}, {bb}")
        k(f"s_and_b32 {self.t1}, {self.sW}, 1\ns_lshl_b32 {self.t1}, {self.t1}, 10\nv_lshl_add_u32 {vo[0]}, {l}, 4, {self.t1}\nv_xor_b32 {vo[1]}, 1024, {vo[0]}")
        k(f"s_mul_i32 {sbase}, {self.sM}, {mstr}\ns_mul_i32 {self.t1}, {self.sW}, {steps*2048}\ns_add_u32 {sbase}, {sbase}, {self.t1}\ns_add_u32 {sbase}, {sbase}, {WS[src]}")
        k(f"s_lshl_b32 {skk}, {self.sRot1 if which == 1 else self.sRot2}, 11")
        if not final:
            self.vm.wait(btok)
            self.unpack(acc[0:16], buf[NS-1])
        self.hook(f'g{which}{L}_pre')
        self.barrier()
        self.vm.wait(ptok)
        if which == 1:
            self.vm.wait_all(); self.lg.wait_all()
            k(f"s_cmp_ge_u32 {self.sJN}, 7\ns_cbranch_scc1 {skip}")
        self.stamp(f'g{which}{L}_go')
        tok = {}
        def ld(i):
            s = so[i % NS]; b = buf[i % NS]
            k(f"s_add_u32 {s}, {sbase}, {skk}\ns_add_u32 {skk}, {skk}, 2048")
            self.vmem(f"buffer_load_dwordx4 {b[0:4]}, {vo[0]}, {self.rWS}, {s} offen sc1")
            if which == 1: k(f"s_and_b32 {skk}, {skk}, 0xffff")
            else: k(f"s_cmp_eq_u32 {skk}, {28*2048}\ns_cselect_b32 {skk}, 0, {skk}")
            tok[i] = self.vmem(f"buffer_load_dwordx4 {b[4:8]}, {vo[1]}, {self.rWS}, {s} offen sc1")
        rel = k.label('reload')
        save = k.lines; k.lines = []
        k(f"{rel}:\ns_sleep 2")
        for j in range(NS):
            k(f"buffer_load_dwordx4 {buf[j][0:4]}, {vo[0]}, {self.rWS}, {so[j]} offen sc1")
            k(f"buffer_load_dwordx4 {buf[j][4:8]}, {vo[1]}, {self.rWS}, {so[j]} offen sc1")
        k(f"s_add_u32 {self.sSpin}, {self.sSpin}, 1\ns_waitcnt vmcnt(0)\ns_setpc_b64 {self.sRet}")
        self.ool += k.lines; k.lines = save
        def check_tail(i):
            rt, ok = k.label('rt'), k.label('ok')
            k(f"s_cbranch_vccnz {rt}\n{ok}:")
            save = k.lines; k.lines = []
            k(f"{rt}:\ns_call_b64 {self.sRet}, {rel}")
            self.check8(buf[i % NS], t)
            k(f"s_cmp_ge_u32 {self.sSpin}, {SPIN_MAX}\ns_cbranch_scc1 {ok}\ns_cbranch_vccnz {rt}\ns_branch {ok}")
            self.ool += k.lines; k.lines = save
        def wfrag(i):
            if which == 1: return self.W1A[i*8:i*8+8]
            return self.W2V[(i//2)*8:(i//2)*8+8] if i % 2 == 0 else wl
        def mfma(i, qd):
            mi, ni = qd & 1, qd >> 1
            w = wfrag(i)[ni*4:ni*4+4]; a = buf[i % NS][mi*4:mi*4+4]; d = acc[qd*16:qd*16+16]
            c = 0 if (i == 0 and qd != 0) else d
            if final: k(f"v_mfma_f32_32x32x16_bf16 {d}, {a}, {w}, {c}")
            else: k(f"v_mfma_f32_32x32x16_bf16 {d}, {w}, {a}, {c}")
        k(f"s_mov_b32 {self.sSpin}, 0")
        for i in range(NS): ld(i)
        self.vm.wait(tok[0]); self.check8(buf[0], t); check_tail(0)
        self.stamp(f'g{which}{L}_first')
        wtok = None
        for i in range(steps):
            b = buf[(i + 1) % NS]
            if wtok is not None: self.lg.wait(wtok); wtok = None
            mfma(i, 1)
            if i >= 1 and i - 1 + NS < steps: ld(i - 1 + NS)
            if which == 2 and i % 2 == 0: wtok = self.w_read(wl, self.w_slot(46 + i // 2))
            mfma(i, 2)
            if i + 1 < steps:
                self.vm.wait(tok[i + 1])
                k(f"v_max3_u32 {t}, {b[0]}, {b[1]}, {b[2]}\nv_max3_u32 {t}, {t}, {b[3]}, {b[4]}\nv_max3_u32 {t}, {t}, {b[5]}, {b[6]}")
            mfma(i, 3)
            if i + 1 < steps:
                k(f"v_max_u32 {t}, {t}, {b[7]}\nv_cmp_eq_u32 vcc, -1, {t}")
            mfma(i, 0)
            if i + 1 < steps: check_tail(i + 1)
        self.stamp(f'g{which}{L}_mfma')
        self.hook(f'g{which}{L}_tail')
        ra = buf[0]
        k(f"v_and_b32 {ra[0]}, 0x3ff, {vo[0]}")
        for jj in range(1, 4):
            k(f"s_xor_b32 {self.t0}, {self.sW}, {jj}\ns_mul_i32 {self.t0}, {self.t0}, 12288\ns_add_u32 {self.t0}, {self.t0}, {SB + (jj-1)*4096}\nv_add_u32 {ra[jj]}, {self.t0}, {ra[0]}")
        k(f"s_mul_i32 {self.t0}, {self.sW}, 12288\ns_add_u32 {self.t0}, {self.t0}, {SB}\nv_add_u32 {ra[4]}, {self.t0}, {ra[0]}")
        for jj in range(1, 4):
            for q in range(4):
                self.ds(f"ds_write_b128 {ra[jj]}, {acc[jj*16+q*4:jj*16+q*4+4]} offset:{q*1024}")
        self.barrier()
        tk = {}
        for q in range(4):
            for jj in range(1, 4):
                tk[q] = self.ds(f"ds_read_b128 {acc[jj*16+q*4:jj*16+q*4+4]}, {ra[4]} offset:{(jj-1)*4096+q*1024}")
        p = buf[1]
        for q in range(4):
            self.lg.wait(tk[q])
            for e in (0, 2):
                o_ = q*4 + e
                k(f"v_pk_add_f32 {acc[o_:o_+2]}, {acc[o_:o_+2]}, {acc[16+o_:18+o_]}\nv_pk_add_f32 {acc[32+o_:34+o_]}, {acc[32+o_:34+o_]}, {acc[48+o_:50+o_]}")
            for e in (0, 2):
                o_ = q*4 + e
                k(f"v_pk_add_f32 {acc[o_:o_+2]}, {acc[o_:o_+2]}, {acc[32+o_:34+o_]}")
        self.stamp(f'g{which}{L}_red')
        if which == 1:
            c0 = 2 * math.sqrt(2 / math.pi) * LOG2E; c1 = c0 * 0.044715
            cc = k.s(4, 2)
            k(f"s_mov_b32 {cc[0]}, {f2h(-c1)}\ns_mov_b32 {cc[1]}, {f2h(-c1)}")
            k(f"v_mov_b32 {acc[48]}, {f2h(-c0)}\nv_mov_b32 {acc[49]}, {f2h(-c0)}")
            w = acc[16:32]
            for e in range(0, 16, 2):
                k(f"v_pk_mul_f32 {w[e:e+2]}, {acc[e:e+2]}, {acc[e:e+2]}")
            for e in range(0, 16, 2):
                k(f"v_pk_fma_f32 {w[e:e+2]}, {w[e:e+2]}, {cc[0:2]}, {acc[48:50]}")
            for e in range(0, 16, 2):
                k(f"v_pk_mul_f32 {w[e:e+2]}, {w[e:e+2]}, {acc[e:e+2]}")
            for e in range(16): k(f"v_exp_f32 {w[e]}, {w[e]}")
            for e in range(0, 16, 2):
                k(f"v_pk_add_f32 {w[e:e+2]}, {w[e:e+2]}, 1.0 op_sel_hi:[1,0]")
            for e in range(16): k(f"v_rcp_f32 {w[e]}, {w[e]}")
            for e in range(0, 16, 2):
                k(f"v_pk_mul_f32 {acc[e:e+2]}, {acc[e:e+2]}, {w[e:e+2]}")
            k.s.free(cc)
        self.pack16(p, acc)
        if which == 1:
            k(f"s_lshr_b32 {self.t0}, {self.sW}, 1\ns_lshl_b32 {self.t0}, {self.t0}, 12\ns_lshl_b32 {self.t1}, {self.sN1}, 13\ns_add_u32 {self.t0}, {self.t0}, {self.t1}")
            k(f"s_mul_i32 {self.t1}, {self.sM}, {GS}\ns_add_u32 {self.t0}, {self.t0}, {self.t1}\ns_add_u32 {self.t0}, {self.t0}, {WS['GA%d' % L]}")
            self.vmem(f"buffer_store_dwordx4 {p[0:4]}, {vo[0]}, {self.rWS}, {self.t0} offen sc1")
            ptok = self.vmem(f"buffer_store_dwordx4 {p[4:8]}, {vo[0]}, {self.rWS}, {self.t0} offen offset:2048 sc1")
            k(f"{skip}:")
        elif not final:
            k(f"v_bfe_u32 {t}, v0, 5, 1\nv_mul_u32_u24 {t}, {BS}, {t}\nv_and_b32 {ra[0]}, 0x1ff, {vo[0]}\nv_add_u32 {t}, {t}, {ra[0]}")
            k(f"s_lshr_b32 {self.t0}, {self.sW}, 1\ns_lshl_b32 {self.t1}, {self.sN2}, 1\ns_add_u32 {self.t0}, {self.t0}, {self.t1}\ns_mul_i32 {self.t0}, {self.t0}, {4*BS}")
            k(f"s_and_b32 {self.t1}, {self.sW}, 1\ns_lshl_b32 {self.t1}, {self.t1}, 9\ns_add_u32 {self.t0}, {self.t0}, {self.t1}\ns_lshl_b32 {self.t1}, {self.sM}, 10\ns_add_u32 {self.t0}, {self.t0}, {self.t1}")
            k(f"s_add_u32 {self.t0}, {self.t0}, {WS['Z1']}\ns_add_u32 {self.t1}, {self.t0}, {2*BS}")
            self.hook('g21_prepub')
            self.vmem(f"buffer_store_dwordx4 {p[0:4]}, {t}, {self.rWS}, {self.t0} offen sc1")
            ptok = self.vmem(f"buffer_store_dwordx4 {p[4:8]}, {t}, {self.rWS}, {self.t1} offen sc1")
        else:
            ro = self.rW1
            self.srd(ro, self.pOUT, S * D * 2)
            k(f"s_and_b32 {self.t0}, {self.sW}, 1\ns_lshl_b32 {self.t0}, {self.t0}, 6\ns_lshl_b32 {self.t1}, {self.sM}, 7\ns_add_u32 {self.t0}, {self.t0}, {self.t1}")
            for e in range(2):
                k(f"v_permlane32_swap_b32 {p[e*4]}, {p[e*4+2]}\nv_permlane32_swap_b32 {p[e*4+1]}, {p[e*4+3]}")
            for e in range(2):
                ptok = self.vmem(f"buffer_store_dwordx4 {p[e*4:e*4+4]}, {self.vOut}, {ro}, {self.t0} offen offset:{e*32}")
            k.v.free(self.vOut)
        k("s_nop 0")
        k.v.free(acc, vo, t, *buf)
        if wl: k.v.free(wl)
        k.s.free(sbase, skk, *so)
        return ptok

    def phase_S(self, ptok):
        k = self.k
        x = k.v(16, 2); g = k.v(8, 2); so = k.s(2)
        dsk, dtok = self.load_dskip()
        self.unpack(x, self.XP)
        k(f"s_add_u32 {so[0]}, {self.sTBo}, {WS['Z1']}\ns_add_u32 {so[1]}, {so[0]}, 4096")
        self.hook('s_pre')
        self.vm.wait(ptok)
        tok = self.gather_issue(g, self.vT16, so[0], so[1])
        self.barrier()
        ktok = self.kimg_load()
        self.zero_pads(); self.zero_ktails()
        self.gather_wait(tok, g, self.vT16, so[0], so[1])
        self.stamp('s_got')
        self.unpack_add(x, g)
        k.v.free(g); k.s.free(so)
        tok = self.ln_to_conv(x, dsk, dtok, 'U2', RED)
        return x, tok, ktok

    def build(self):
        k = self.k
        self.sched = {}
        self.prologue()
        itok = self.init_bufs(['U1', 'Y1'])
        x = k.v(16, 2); a = k.v()
        rX = k.s(4, 4)
        self.srd(rX, self.pX0, S * D * 2)
        for i in range(16): k(f"v_mov_b32 {x[i]}, 0")
        k(f"v_lshlrev_b32 {a}, 1, v0\ns_lshl_b32 {self.t2}, {self.sTB}, 13\ns_add_u32 {self.t3}, {self.t2}, 4096")
        for i in range(8):
            for e in range(2):
                xtok = self.vmem(f"buffer_load_short_d16_hi {x[e*8+i]}, {a}, {rX}, {self.t2 if i < 4 else self.t3} offen offset:{(i & 3)*1024 + e*512}")
        k.v.free(a); k.s.free(rX)
        self.kgen_load()
        dsk, dtok = self.load_dskip()
        self.w_setup()
        self.w_rtok = {}
        self.plan()
        self.zero_pads()
        self.hook('p0_a')
        self.vm.wait(itok)
        k("s_barrier")
        lab = k.label('arr')
        bo = k.v(); bv = k.v()
        k(f"s_and_b32 {self.t0}, s2, 3\ns_lshl_b32 {self.t0}, {self.t0}, 6\nv_mov_b32 {bo}, {self.t0}\nv_mov_b32 {bv}, 1")
        k(f"s_cmp_lg_u32 {self.sW}, 0\ns_cbranch_scc1 {lab}\ns_mov_b64 exec, 1")
        k(f"global_atomic_add {bo}, {bv}, {self.pDBG} sc1\ns_mov_b64 exec, -1\n{lab}:")
        k(f"v_and_b32 {bo}, 3, v0\nv_lshlrev_b32 {bo}, 6, {bo}")
        self.vm.wait(xtok)
        self.stamp('x0')
        ptok = self.ln_to_conv(x, dsk, dtok, 'U1', RED)
        self.stamp('p0_pub')
        self.hook('p0_b')
        self.kgen_tables()
        self.stamp('ktab')
        lp, ok = k.label('b0lp'), k.label('b0ok')
        k(f"s_mov_b32 {self.sSpin}, 0\n{lp}:")
        self.vmem(f"global_load_dword {bv}, {bo}, {self.pDBG} sc1")
        self.vm.wait_all()
        k(f"v_cmp_gt_u32 vcc, 64, {bv}\ns_add_u32 {self.sSpin}, {self.sSpin}, 1\ns_cmp_ge_u32 {self.sSpin}, {SPIN_MAX}\ns_cbranch_scc1 {ok}\ns_cbranch_vccnz {lp}\n{ok}:")
        k.v.free(bo, bv)
        self.stamp('b0')
        self.conv_gather_issue('U1')
        self.hook('p0_c')
        self.kgen_mfma()
        self.kimg_save()
        self.stamp('kdone')
        ptok = self.conv('Y1', 1)
        self.stamp('c1_pub')
        ptok = self.phase_L(x, ptok, 1)
        self.stamp('l1_pub')
        ptok = self.gemm(1, 1, ptok)
        self.stamp('g11_pub')
        ptok = self.gemm(2, 1, ptok)
        self.stamp('g21_pub')
        x, ptok, ktok = self.phase_S(ptok)
        self.stamp('s_pub')
        self.vm.wait(ptok)
        self.conv_gather_issue('U2')
        ptok = self.conv('Y2', 2, ktok)
        self.stamp('c2_pub')
        ptok = self.phase_L(x, ptok, 2)
        self.stamp('l2_pub')
        ptok = self.gemm(1, 2, ptok)
        self.stamp('g12_pub')
        ptok = self.gemm(2, 2, ptok)
        if self.prof:
            self.vm.wait_all()
            self.stamp('end')
            a = k.v()
            k(f"s_lshl_b32 {self.t0}, s2, 10\ns_add_u32 {self.t0}, {self.t0}, {WS['PROF']}\nv_lshlrev_b32 {a}, 2, v0")
            k(f"buffer_store_dword {self.vStamp}, {a}, {self.rWS}, {self.t0} offen")
        k(f"{self.lend}:\ns_endpgm")
        k.lines += self.ool
        return k

    def plan(self):
        self.slot_of = [i % 14 for i in range(60)]
        I, Dn = self.w_issue, self.w_drain
        def blocking():
            for n in (14, 14, 14, 4):
                I(n); Dn(n)
            I(14)
        def drainall(): self.vm.wait_all()
        self.sched = {
            'c1_main': [lambda: self.init_bufs(['H1', 'GA1', 'Z1', 'U2'])],
            'c1_prebar': [drainall],
            'l1_pre': [blocking],
            's_pre': [lambda: self.init_bufs(['Y2'])],
            'c2_main': [lambda: self.init_bufs(['H2', 'GA2', 'X3'])],
            'c2_prebar': [drainall],
        }

HEADER = open('cdna_kernels/' + NAME + '.s.ref').read().split('; Override launch')[0].rstrip('\n').split('\n')

def generate(path, prof=False, opts=None, aslist=False):
    g = Gen(prof, opts)
    k = g.build()
    out = list(HEADER)
    if aslist: out.append(f"; @launch kernel={k.name} grid=(256,1,1) block=(256,1,1) lds={LDS_TOTAL}")
    else: out.append(f"; @launch grid=(256,1,1) block=(256,1,1) lds={LDS_TOTAL}")
    out.append('.amdgcn_target "amdgcn-amd-amdhsa--gfx950"')
    out.append(k.text())
    out.append('.section .rodata,"a"\n.p2align 6')
    out.append(k.desc())
    open(path, 'w').write('\n'.join(out))
    return g

if __name__ == '__main__':
    g = generate('k_prof.s', prof=True, aslist=True)
    open('k_prof.names', 'w').write('\n'.join(g.stamp_names))
    generate('k_list.s', aslist=True)
    g = generate('k_final.s')
    print('vgpr hi', g.k.v.hi, 'sgpr hi', g.k.s.hi, 'lines', len(g.k.lines))
```

```python
import re

class Reg:
    def __init__(self, kind, lo, n=1):
        self.kind, self.lo, self.n = kind, lo, n
    def __str__(self):
        if self.n == 1: return f"{self.kind}{self.lo}"
        return f"{self.kind}[{self.lo}:{self.lo+self.n-1}]"
    __repr__ = __str__
    def __format__(self, spec): return str(self)
    def __getitem__(self, i):
        if isinstance(i, slice):
            a = 0 if i.start is None else i.start
            b = self.n if i.stop is None else i.stop
            assert 0 <= a < b <= self.n, (a, b, self.n)
            return Reg(self.kind, self.lo + a, b - a)
        assert 0 <= i < self.n, (i, self.n)
        return Reg(self.kind, self.lo + i, 1)
    def __len__(self): return self.n

class Alloc:
    def __init__(self, kind, start, limit):
        self.kind, self.limit = kind, limit
        self.used = [False] * limit
        for i in range(start): self.used[i] = True
        self.hi = start
    def __call__(self, n=1, align=None):
        if align is None:
            align = 1 if n == 1 else (2 if n < 4 else 4)
            if self.kind == 'v' or self.kind == 'a':
                align = 1 if n == 1 else 2
        if self.kind == 'v' and n >= 4:
            lo = (self.limit - n) // align * align
            while any(self.used[lo:lo+n]):
                lo -= align
                assert lo >= 0, f"out of {self.kind} regs"
            for i in range(lo, lo+n): self.used[i] = True
            self.hi = max(self.hi, lo + n)
            return Reg(self.kind, lo, n)
        lo = 0
        while True:
            lo = (lo + align - 1) // align * align
            assert lo + n <= self.limit, f"out of {self.kind} regs"
            if not any(self.used[lo:lo+n]): break
            lo += 1
        for i in range(lo, lo+n): self.used[i] = True
        self.hi = max(self.hi, lo + n)
        return Reg(self.kind, lo, n)
    def free(self, *rs):
        for r in rs:
            for i in range(r.lo, r.lo + r.n):
                assert self.used[i]
                self.used[i] = False

_REG_RE = re.compile(r'(?<![\w.])([vsa])(?:(\d+)|\[(\d+):(\d+)\])(?![\w])')
TRANS = ('v_exp_f32','v_log_f32','v_rcp_f32','v_rsq_f32','v_sqrt_f32','v_sin_f32','v_cos_f32','v_rcp_iflag_f32',
         'v_exp_f16','v_log_f16','v_rcp_f16','v_rsq_f16','v_sqrt_f16','v_sin_f16','v_cos_f16')

def regs_of(tok):
    out = set()
    for m in _REG_RE.finditer(tok):
        k = m.group(1)
        if m.group(2) is not None: out.add((k, int(m.group(2))))
        else:
            for i in range(int(m.group(3)), int(m.group(4)) + 1): out.add((k, i))
    if re.search(r'\bvcc(_lo|_hi)?\b', tok): out.add(('x', 'vcc'))
    if re.search(r'\bexec(_lo|_hi)?\b', tok): out.add(('x', 'exec'))
    if re.search(r'\bm0\b', tok): out.add(('x', 'm0'))
    return out

def split_ops(s):
    ops, depth, cur = [], 0, ''
    for ch in s:
        if ch in '[(': depth += 1
        if ch in '])': depth -= 1
        if ch == ',' and depth == 0:
            ops.append(cur.strip()); cur = ''
        else: cur += ch
    if cur.strip(): ops.append(cur.strip())
    return ops

class Ins:
    def __init__(self, text):
        self.text = text
        t = text.split(';')[0].strip()
        self.label = None
        self.op = None
        self.dst, self.src = set(), set()
        if not t or t.startswith('.'):
            self.kind = 'dir'; return
        if t.endswith(':'):
            self.kind = 'label'; self.label = t[:-1]; return
        parts = t.split(None, 1)
        op = parts[0]; rest = parts[1] if len(parts) > 1 else ''
        base = re.sub(r'_(e32|e64|dpp|sdwa)$', '', op)
        self.op = base
        ops = split_ops(rest)
        self.ops = ops
        R = [regs_of(o) for o in ops]
        allr = set().union(*R) if R else set()
        self.dpp = ('_dpp' in op) or bool(re.search(r'\b(row_|quad_perm|wave_|row_bcast|row_newbcast)', rest))
        self.sdwa = ('_sdwa' in op) or 'dst_sel' in rest
        self.opsel = 'op_sel' in rest and not (base.startswith('v_pk_') and base.endswith('_f32'))
        if base.startswith('v_mfma') or base.startswith('v_smfmac'):
            self.kind = 'mfma'
            self.dst = R[0]; self.srcA = R[1]; self.srcB = R[2]; self.srcC = R[3] if len(R) > 3 else set()
            self.src = self.srcA | self.srcB | self.srcC
            self.dstr, self.cstr = ops[0], ops[3].split()[0] if len(ops) > 3 else ''
            if '32x32x16' in base or '32x32x8' in base: self.passes = 8
            elif '16x16x32' in base or '16x16x16' in base: self.passes = 4
            elif '32x32x2_f32' in base: self.passes = 16
            elif '16x16x4_f32' in base: self.passes = 8
            elif '4x4x4' in base: self.passes = 2
            else: raise Exception('unknown mfma ' + base)
            self.sgemm = base.endswith('_f32') and ('x2_f32' in base or 'x4_f32' in base or 'x1_' in base)
        elif base.startswith('v_'):
            self.kind = 'valu'
            if base == 'v_nop': pass
            elif base.startswith('v_cmpx'):
                self.dst = R[0] | {('x', 'exec')}; self.src = set().union(*R[1:])
            elif base.startswith('v_cmp'):
                self.dst = R[0]; self.src = set().union(*R[1:])
            elif base in ('v_add_co_u32','v_sub_co_u32','v_subrev_co_u32','v_addc_co_u32','v_subb_co_u32','v_mad_u64_u32','v_div_scale_f32'):
                self.dst = R[0] | R[1]; self.src = set().union(*R[2:])
            elif base.startswith('v_permlane') and 'swap' in base or base == 'v_swap_b32':
                self.dst = R[0] | R[1]; self.src = R[0] | R[1]
            else:
                self.dst = R[0]; self.src = set().union(*R[1:]) if len(R) > 1 else set()
                if base.startswith(('v_fmac', 'v_mac', 'v_pk_fmac', 'v_dot2c', 'v_dot4c', 'v_writelane')) or self.dpp or self.sdwa or self.opsel:
                    self.src |= R[0]
                if base == 'v_cndmask_b32' and len(ops) == 3: self.src.add(('x', 'vcc'))
                if base == 'v_div_fmas_f32': self.src.add(('x', 'vcc'))
            self.trans = base in TRANS
        elif base.startswith(('buffer_', 'global_', 'flat_', 'scratch_')):
            self.kind = 'vmem'
            self.lds = bool(re.search(r'\blds\b', rest)) or '_lds_' in base
            self.store = 'store' in base or 'atomic' in base
            if base in ('buffer_wbl2', 'buffer_inv') or not ops or not R: pass
            elif 'atomic' in base:
                self.src = allr
                if 'sc0' in rest: self.dst = R[0]
            elif self.store or self.lds: self.src = allr
            else:
                self.dst = R[0]; self.src = set().union(*R[1:])
            self.wide = self.store and ('x3' in base or 'x4' in base or 'cmpswap_x2' in base)
            if self.wide:
                self.data = R[0] if base.startswith('buffer_') else R[1]
        elif base.startswith('ds_'):
            self.kind = 'ds'
            if base.startswith(('ds_read', 'ds_bpermute', 'ds_permute', 'ds_swizzle')) or '_rtn' in base:
                self.dst = R[0]; self.src = set().union(*R[1:]) if len(R) > 1 else set()
            else: self.src = allr
            self.addtid = 'addtid' in base
        elif base.startswith('s_'):
            self.kind = 'salu'
            if base.startswith(('s_load', 's_buffer_load', 's_memtime', 's_memrealtime', 's_atomic')):
                self.kind = 'smem'
                self.dst = R[0]; self.src = set().union(*R[1:]) if len(R) > 1 else set()
            elif base.startswith(('s_cmp', 's_bitcmp', 's_waitcnt', 's_barrier', 's_nop', 's_branch', 's_cbranch', 's_endpgm', 's_setprio', 's_sleep', 's_setpc', 's_setreg')):
                self.src = allr
            else:
                self.dst = R[0] if R else set(); self.src = set().union(*R[1:]) if len(R) > 1 else set()
                if 'saveexec' in base: self.dst = self.dst | {('x', 'exec')}
        else:
            raise Exception('unknown instruction: ' + text)
    def states(self):
        if self.kind in ('dir', 'label'): return 0
        if self.op == 's_nop': return int(self.ops[0], 0) + 1
        return 1

def vg(s): return {r for r in s if r[0] in 'va'}
def sg(s): return {r for r in s if r[0] == 's' or r == ('x', 'vcc')}

def need(p, c):
    n = 0
    pk, ck = p.kind, c.kind
    if pk == 'valu':
        dv, ds_ = vg(p.dst), sg(p.dst)
        if ck == 'mfma' and dv & c.src: n = max(n, 2)
        if p.op.startswith('v_dot') and dv & (c.src | c.dst):
            if not (c.op == p.op and dv & c.dst and not dv & (c.src - c.dst)): n = max(n, 3)
        if ck == 'valu':
            if c.dpp and dv & c.src: n = max(n, 2)
            if c.op.startswith('v_permlane') and dv & c.src: n = max(n, 2)
            if c.op in ('v_readlane_b32', 'v_readfirstlane_b32') and dv & c.src: n = max(n, 1)
            if p.trans and dv & c.src: n = max(n, 1)
            if (p.sdwa or p.opsel) and dv & (c.src | c.dst): n = max(n, 1)
            if ds_ & c.src:
                n = max(n, 2)
                if c.op in ('v_readlane_b32', 'v_writelane_b32', 'v_div_fmas_f32'): n = max(n, 4)
            if ('x', 'exec') in p.dst:
                if c.dpp: n = max(n, 5)
                if c.op in ('v_readlane_b32', 'v_readfirstlane_b32', 'v_writelane_b32') or c.op.startswith('v_permlane'): n = max(n, 4)
                if ('x', 'exec') in c.src: n = max(n, 2)
        if ck == 'mfma' and ('x', 'exec') in p.dst: n = max(n, 4)
        if ck == 'vmem' and ds_ & c.src: n = max(n, 5)
        if ck in ('salu', 'smem') and ds_ & c.src: n = max(n, 1)
        if p.trans and ck in ('vmem', 'ds', 'mfma') and dv & c.src: n = max(n, 1 if ck != 'mfma' else 2)
    if pk == 'salu' and ('x', 'm0') in p.dst:
        if (ck == 'vmem' and c.lds) or (ck == 'ds' and c.addtid): n = max(n, 1)
    if pk == 'vmem' and getattr(p, 'wide', False):
        if vg(c.dst) & p.data: n = max(n, 2 if ck in ('valu',) else 1)
    if pk == 'mfma':
        idx = {2: 0, 4: 1, 8: 2, 16: 3}[p.passes]
        if not p.sgemm:
            if ck == 'mfma':
                if c.srcC & p.dst:
                    if c.cstr == p.dstr and c.passes == p.passes and not c.sgemm: n = max(n, [2, 0, 0, 0][idx])
                    else: n = max(n, [4, 6, 10, 18][idx])
                if (c.srcA | c.srcB) & p.dst: n = max(n, [5, 8, 12, 20][idx])
                if (c.dst & p.dst) and not (c.srcC & p.dst): n = max(n, [5, 8, 12, 20][idx])
            else:
                if (c.src | c.dst) & p.dst: n = max(n, [5, 8, 12, 20][idx])
                if ck == 'valu' and c.dst & p.srcC: n = max(n, [1, 3, 7, 15][idx])
        else:
            if ck == 'mfma':
                if c.srcC & p.dst:
                    if c.cstr == p.dstr and c.sgemm: n = max(n, [2, 0, 0, 0][idx])
                    else: n = max(n, [2, 4, 8, 16][idx])
                if (c.srcA | c.srcB) & p.dst: n = max(n, [4, 6, 10, 18][idx])
            elif (c.src | c.dst) & p.dst: n = max(n, [4, 6, 10, 18][idx])
    return n

def fix_hazards(lines):
    ins = [Ins(l) for l in lines]
    MAXW = 20
    changed = True
    rounds = 0
    while changed:
        changed = False
        rounds += 1
        labels = {x.label: i for i, x in enumerate(ins) if x.kind == 'label'}
        preds = {}
        for i, x in enumerate(ins):
            if x.op and (x.op.startswith('s_cbranch') or x.op == 's_branch'):
                tgt = x.ops[0]
                if tgt in labels: preds.setdefault(labels[tgt], []).append(i)
        out = []
        for i, c in enumerate(ins):
            if c.kind in ('dir', 'label') or c.op == 's_nop':
                out.append(c); continue
            worst = 0
            stack = [(i - 1, 0)]
            seen = {}
            while stack:
                j, dist = stack.pop()
                while j >= 0 and dist < MAXW:
                    if seen.get(j, 99) <= dist: break
                    seen[j] = dist
                    p = ins[j]
                    if p.kind == 'label':
                        for b in preds.get(j, []): stack.append((b, dist))
                        if j > 0 and ins[j-1].op in ('s_branch', 's_endpgm', 's_setpc_b64'): break
                    elif p.kind != 'dir':
                        w = need(p, c) - dist
                        if w > worst: worst = w
                        dist += p.states()
                    j -= 1
            if worst > 0:
                changed = True
                while worst > 0:
                    k = min(worst, 16)
                    out.append(Ins(f"    s_nop {k-1}"))
                    worst -= k
            out.append(c)
            if changed:
                out.extend(ins[i+1:]); break
        ins = out
        if changed and rounds > 20000: raise Exception('hazard loop')
    return [x.text for x in ins]

class Kern:
    def __init__(self, name, nsgpr_start=3):
        self.name = name
        self.lines = []
        self.v = Alloc('v', 1, 256)
        self.a = Alloc('a', 0, 256)
        self.s = Alloc('s', nsgpr_start, 102)
        self.nlab = 0
    def __call__(self, text):
        for l in text.split('\n'):
            l = l.strip()
            if not l: continue
            if l.endswith(':') or l.startswith('.'): self.lines.append(l)
            else: self.lines.append('    ' + l)
    def label(self, base='L'):
        self.nlab += 1
        return f"{self.name}_{base}{self.nlab}"
    def text(self, hazards=True, align=False):
        body = fast_fix(self.lines) if hazards else self.lines
        if align: body = align_pass(body)
        return (f".text\n.globl {self.name}\n.p2align 8\n.type {self.name},@function\n{self.name}:\n" + '\n'.join(body) + "\n")
    def desc(self, extra=''):
        nv = max(self.v.hi, 1)
        acc = (nv + 3) // 4 * 4
        tot = acc + self.a.hi if self.a.hi else nv
        return (f".amdhsa_kernel {self.name}\n  .amdhsa_next_free_vgpr {tot}\n  .amdhsa_next_free_sgpr {max(self.s.hi, 16)}\n"
                f"  .amdhsa_accum_offset {acc}\n  .amdhsa_group_segment_fixed_size 0\n  .amdhsa_kernarg_size 120\n"
                f"  .amdhsa_user_sgpr_count 2\n  .amdhsa_user_sgpr_kernarg_segment_ptr 1\n  .amdhsa_system_sgpr_workgroup_id_x 1\n"
                f"  .amdhsa_float_denorm_mode_32 3\n{extra}.end_amdhsa_kernel\n")

def fast_fix(lines):
    ins = [Ins(l) for l in lines]
    MAXW = 20
    for rounds in range(10):
        changed = False
        labels = {x.label: x for x in ins if x.kind == 'label'}
        out = []
        pos_prev = {id(x): i for i, x in enumerate(ins)}
        fwd = {}
        back = {}
        for i, x in enumerate(ins):
            if x.op and (x.op.startswith('s_cbranch') or x.op == 's_branch'):
                back.setdefault(x.ops[0], []).append(i)
        for i, c in enumerate(ins):
            if c.kind in ('dir', 'label') or c.op == 's_nop':
                out.append(c); continue
            worst = 0
            stack = [(i - 1, 0, None)]
            seen = {}
            while stack:
                j, dist, mq = stack.pop()
                while j >= 0 and dist < MAXW:
                    key = (j, mq)
                    if seen.get(key, 99) <= dist: break
                    seen[key] = dist
                    p = ins[j]
                    if p.kind == 'label':
                        for b in back.get(p.label, []): stack.append((b, dist, mq))
                        jj = j - 1
                        while jj >= 0 and ins[jj].kind == 'dir': jj -= 1
                        if jj >= 0 and ins[jj].op in ('s_branch', 's_endpgm', 's_setpc_b64'): break
                    elif p.kind != 'dir':
                        if p.kind == 'mfma':
                            if mq is not None: dist = max(dist, p.passes - 1 + mq)
                            mq = dist
                        w = need(p, c) - dist
                        if w > worst: worst = w
                        dist += p.states() + getattr(p, 'pad_before', 0)
                    j -= 1
            c.pad_before = 0
            if worst > 0:
                changed = True
                c.pad_before = worst
                while worst > 0:
                    k = min(worst, 16)
                    out.append(Ins(f"    s_nop {k-1}"))
                    worst -= k
            out.append(c)
        for x in out: x.pad_before = 0
        ins = out
        if not changed: break
    else:
        raise Exception('hazard fix did not converge')
    return [x.text for x in ins]

def build_file(header_lines, launches, kerns):
    out = list(header_lines)
    for (n, g, b, l) in launches:
        out.append(f"; @launch kernel={n} grid=({g},1,1) block=({b},1,1) lds={l}")
    out.append('.amdgcn_target "amdgcn-amd-amdhsa--gfx950"')
    for k in kerns: out.append(k.text())
    out.append('.section .rodata,"a"')
    for k in kerns:
        out.append('.p2align 6')
        out.append(k.desc())
    return '\n'.join(out) + '\n'

def align_pass(lines, nop_run=7):
    import subprocess
    r = subprocess.run(['llvm-mc', '-triple=amdgcn-amd-amdhsa', '-mcpu=gfx950', '-show-encoding'], input='\n'.join(lines) + '\n', capture_output=True, text=True)
    assert r.returncode == 0, r.stderr[:2000]
    sizes = [l.count(',', l.index('encoding:')) + 1 for l in r.stdout.split('\n') if 'encoding:' in l]
    idx = [i for i, l in enumerate(lines) if not (l.strip().endswith(':') or l.strip().startswith('.') or not l.strip())]
    assert len(idx) == len(sizes), (len(idx), len(sizes))
    lines = list(lines)
    def widenable(t):
        op = t.split()[0]
        return op.startswith('v_') and op not in ('v_readfirstlane_b32', 'v_nop', 'v_accvgpr_mov_b32', 'v_dot2c_f32_bf16') and not op.endswith(('_e64', '_dpp', '_sdwa'))
    off = 0; n = len(idx); j = 0; extra = {}
    while j < n:
        if sizes[j] != 4:
            off += sizes[j]; j += 1; continue
        e = j
        while e < n and sizes[e] == 4: e += 1
        off += 4 * (e - j)
        if off % 8 and e < n:
            cand = [q for q in range(j, e) if widenable(lines[idx[q]].strip())]
            start = off - 4 * (e - j)
            cand = [q for q in cand if (start + 4 * (q - j)) % 8 == 0] or cand
            if cand:
                q = cand[-1]; t = lines[idx[q]].strip(); op = t.split()[0]
                lines[idx[q]] = '    ' + op.replace('_e32', '') + '_e64' + t[len(op):]
                off += 4
            else:
                run = 0; q = e
                while q < n and sizes[q] == 8 and not lines[idx[q]].strip().startswith('v_mfma'): run += 1; q += 1
                if run >= nop_run:
                    extra[idx[j]] = '    s_nop 0'; off += 4
        j = e
    out = []
    for i, l in enumerate(lines):
        if i in extra: out.append(extra[i])
        out.append(l)
    return out
```

```python
import sys, math, os, struct
from asmgen import *

NAME = 'interleave_layers__ssm_conv_s4d__mixer_token_mlp__prompt'
S, D, F = 2048, 512, 1792
BS = 8192 + 128
PADSZ = 9 * 262144
KIS = 4096 + 128
def _ws_map():
    off = 0; m = {}
    for nm in ['U1', 'Y1', 'H1', 'GA1', 'Z1', 'U2', 'Y2', 'H2', 'GA2', 'X3']:
        m[nm] = off
        off += PADSZ
    m['KI'] = off; off += 256 * 4 * KIS
    m['FL'] = off; off += 4 * 32768
    m['EP'] = off; off += 4096
    m['PROF'] = off; off += 256 * 4 * 256
    m['END'] = off
    return m
WS = _ws_map()
HS = 128 * 2048
GS = 112 * 2048
SB = 0
WB = 49152
KCS = 4160
KCH = 4 * KCS
UB = SB + 33792
UCS = 4672
RED = UB + 2 * UCS
TROW = 528
JS = 1152
PH = 8 * JS
PC = 2 * PH + 16
LDS_TOTAL = 163840
SPIN_MAX = 1 << 15
LOG2E = 1.4426950408889634
TAGC = 0x9E3779B9
HOPS = ['U1', 'GA1', 'GA2', 'Z1']
TCS = 32 * TROW

import json
try: BEST = json.load(open(os.path.join(os.path.dirname(os.path.abspath(__file__)), 'best.json')))
except Exception: BEST = {}

def f2h(x): return hex(struct.unpack('<I', struct.pack('<f', x))[0])

class Cnt:
    def __init__(self, k, name, mx):
        self.k, self.name, self.mx = k, name, mx
        self.n = 0; self.done = 0
    def issue(self, cnt=1):
        self.n += cnt
        return self.n
    def wait(self, tok):
        if tok is None or tok <= self.done: return
        c = min(self.n - tok, self.mx)
        self.k(f"s_waitcnt {self.name}({c})")
        self.done = max(self.done, self.n - c)
    def wait_all(self):
        self.k(f"s_waitcnt {self.name}(0)")
        self.done = self.n

def roundrobin(gens, after=None):
    alive = list(gens)
    n = 0
    while alive:
        for g in list(alive):
            try:
                next(g); n += 1
                if after: after(n)
            except StopIteration:
                while g in alive: alive.remove(g)

class Q:
    def __init__(self): self.q = []; self.cur = None; self.kind = None
    def peek(self):
        while self.kind is None:
            if self.cur is None:
                if not self.q: return None
                self.cur = self.q.pop(0)()
            try: self.kind = next(self.cur)
            except StopIteration: self.cur = None
        return self.kind
    def step(self):
        self.kind = None
        try: self.kind = next(self.cur)
        except StopIteration: self.cur = None

class Gen:
    def __init__(self, prof=False, opts=None):
        self.prof = prof
        self.o = dict(BEST)
        for kk, vv in (opts or {}).items():
            self.o[kk] = dict(self.o.get(kk, {}), **vv) if isinstance(vv, dict) else vv
        WS.update(_ws_map())
        for a_, b_ in self.o.get('alias', {}).items(): WS[a_] = WS[b_]
        k = self.k = Kern(NAME + '_kernel')
        self.vm = Cnt(k, 'vmcnt', 63); self.lg = Cnt(k, 'lgkmcnt', 15)
        self.ool = []
        self.nstamp = 0; self.stamp_names = []
        self.qv = Q(); self.qd = Q(); self.bg_t = 1000; self.now = 0; self.pend_init = 0; self.w_time = {}
        self.sched = {}
        self.init_tok = None; self.vgap = 64; self.bg_hold = False
    def vmem(self, text):
        self.k(text); return self.vm.issue()
    def ds(self, text):
        self.k(text); return self.lg.issue()
    def stamp(self, name):
        k = self.k
        lk = self.o.get('leak')
        if lk and name in lk[:2]:
            if not hasattr(self, 'sLeak'): self.sLeak = [k.s(2), k.s(2), k.s(2)]
            k(f"s_memrealtime {self.sLeak[lk.index(name)]}")
            k("s_waitcnt lgkmcnt(0)")
        if not self.prof: return
        only = self.o.get('stamps')
        if only and name not in only and name not in ('start', 'end'): return
        k(f"{'s_memtime' if self.o.get('cyc') else 's_memrealtime'} {self.sStamp}")
        k("s_waitcnt lgkmcnt(0)")
        k(f"v_writelane_b32 {self.vStamp}, {self.sStamp[0]}, {self.nstamp}")
        self.nstamp += 1; self.stamp_names.append(name)
    def count(self, name):
        if self.prof and self.o.get('counts'):
            self.ncnt = getattr(self, 'ncnt', 0) + 1
            self.k(f"v_writelane_b32 {self.vStamp}, {self.sSpin}, {64 - self.ncnt}")
            self.cnt_names = getattr(self, 'cnt_names', []) + [name]
    def barrier(self, tok='all'):
        self.lg.wait(self.lg.n if tok == 'all' else tok)
        self.k("s_barrier")
    def filler(self, n, r):
        for i in range(n if self.o.get('fill', 1) else 0): self.k(f"v_mov_b32 {r}, {r}")
    def lane(self, dst): self.k(f"v_and_b32 {dst}, 63, v0")
    def srd(self, srd, base, nbytes):
        self.k(f"s_mov_b32 {srd[0]}, {base[0]}\ns_mov_b32 {srd[1]}, {base[1]}\ns_mov_b32 {srd[2]}, {hex(nbytes)}\ns_mov_b32 {srd[3]}, 0x20000")
    def outline(self, fn):
        k = self.k
        save = k.lines; k.lines = []
        fn()
        self.ool += k.lines; k.lines = save
    def hook(self, name):
        for item in self.sched.get(name, '').split():
            now = item.endswith('!')
            it = item.rstrip('!')
            if it == 'flush': self.flush(); continue
            if it == 'R': self.drain_ready(); continue
            if it == 'initwait':
                while self.pend_init: self.force(self.qv)
                self.vm.wait(self.init_tok); continue
            q = self.qd if it[0] == 'D' else self.qv
            if it[0] == 's': self.pend_init += 1
            q.q += self.expand(it)
            if now:
                while q.peek() is not None: self.force(q)
    def blocked(self, q):
        kd = q.peek()
        if kd == 'slot': return not self.free_slots()
        if kd == 'item': return not self.can_drain()
        return False
    def force(self, q):
        o = self.qd if q is self.qv else self.qv
        if self.blocked(q):
            assert o.peek() is not None and not self.blocked(o), 'background deadlock'
            o.step()
        else: q.step()
    def flush(self):
        while self.qv.peek() is not None: self.force(self.qv)
        self.drain_ready()
    def can_drain(self):
        i = self.w_drained
        if i >= self.w_issued or i >= 23 or not self.ta_ready: return False
        it = self.seq[i]
        return it < 16 or not any(self.hiv.used[144 + (it-16)*16:160 + (it-16)*16])
    def drain_ready(self, upto=0):
        q = self.qd
        while q.peek() is not None:
            if q.kind == 'item' and not (self.can_drain() and (self.w_tok[self.w_drained] <= self.vm.done or self.w_drained < upto)): break
            q.step()
    def bg(self, n, dt):
        self.bg_t += dt; self.now += dt
        while n > 0:
            kd = self.qv.peek()
            ok = kd is not None and not self.blocked(self.qv) and not self.bg_hold
            if ok and kd == 'v': ok = self.bg_t >= self.vgap
            if ok and kd[0] == 'n': ok = self.bg_t >= int(kd[1:])
            if ok:
                if kd == 'v': self.bg_t = 0
                if kd[0] != 'n': n -= 1
                self.qv.step(); continue
            kd = self.qd.peek()
            if kd is None or self.blocked(self.qd): return
            if kd == 'item':
                i = self.w_drained
                if self.w_tok[i] > self.vm.done and self.now - self.w_time[i] < self.o.get('lag', 900): return
            self.qd.step(); n -= 1
    def expand(self, it):
        if it[0] == 'I': return [self.w_issue] * int(it[1:])
        if it[0] == 'D': return [self.w_drain] * int(it[1:])
        if it[0] == 'G':
            def setgap():
                self.vgap = int(it[1:])
                return
                yield
            return [setgap]
        if it[0] == 'N':
            def pause(): yield 'n' + it[1:]
            return [pause]
        if it == 'K': return [self.kimg_store]
        if it == 'V2': return [self.w_voff2]
        if it == 'C': return [self.code_touch]
        if it[0] == 'T': return [lambda: self.touch(it[1:])]
        if it[0] == 's': return [lambda: self.init_buf(it[1:])]
        raise Exception(it)

    def prologue(self):
        k = self.k
        self.lend = k.label('end')
        self.P = k.s(16, 4); self.P2 = k.s(8, 4); self.P3 = k.s(4, 4); self.PW = k.s(2)
        k(f"s_cmp_ge_u32 s2, 256\ns_cbranch_scc1 {self.lend}")
        if self.o.get('leak') and self.o['leak'][0] == 'entry':
            self.sLeak = [k.s(2), k.s(2), k.s(2)]
            k(f"s_memrealtime {self.sLeak[0]}")
        k(f"s_load_dwordx16 {self.P}, s[0:1], 0\ns_load_dwordx8 {self.P2}, s[0:1], 64\ns_load_dwordx4 {self.P3}, s[0:1], 96\ns_load_dwordx2 {self.PW}, s[0:1], 112")
        self.pX0, self.pLA, self.pAI, self.pCR, self.pCI, self.pDT, self.pDS = [self.P[2*i:2*i+2] for i in range(7)]
        self.pW1, self.pB1, self.pW2, self.pB2 = [self.P2[2*i:2*i+2] for i in range(4)]
        self.pOUT, self.pDBG = self.P3[0:2], self.P3[2:4]
        self.sW = k.s(); self.sTB = k.s(); self.sM = k.s(); self.sN1 = k.s(); self.sN2 = k.s(); self.sJN = k.s()
        self.t0 = k.s(); self.t1 = k.s(); self.t2 = k.s(); self.t3 = k.s(); self.sSpin = k.s(); self.sRet = k.s(2); self.sTBo = k.s(); self.sTB8 = k.s()
        self.b0 = k.s(); self.b1 = k.s()
        self.rWS = k.s(4, 4); self.rW1 = k.s(4, 4); self.rW2 = k.s(4, 4)
        self.W2V = Reg('v', 144, 112)
        for i in range(144, 256): k.v.used[i] = True
        k.v.hi = 256
        self.hiv = Alloc('v', 144, 256)
        self.W1A = k.a(256, 4)
        self.XP = k.v(8, 2)
        self.vT16 = k.v()
        if self.prof:
            self.vStamp = k.v(); self.sStamp = k.s(2)
            k(f"v_mov_b32 {self.vStamp}, 0")
        self.wv2 = [k.v() for _ in range(4)]
        self.wv1 = [self.hialloc(1) for _ in range(4)]
        self.wV1, self.wV2 = self.wv1[0], self.wv2[0]
        self.ta = [k.v() for _ in range(4)]
        self.cA = [k.v() for _ in range(3)]
        t = k.v()
        pc = self.sPC = k.s(2)
        lab = self.lpc = k.label('pc')
        k(f"s_getpc_b64 {pc}\n{lab}:")
        k(f"s_lshr_b32 {self.t0}, s2, 3\ns_lshl_b32 {self.t0}, {self.t0}, 11\nv_lshl_add_u32 {t}, v0, 3, {self.t0}")
        k(f"v_min_u32 {t}, {k.name}_codeend-{lab}-8, {t}")
        self.vmem(f"global_load_dwordx2 {self.XP[4:6]}, {t}, {pc}")
        k(f"v_lshrrev_b32 {t}, 6, v0\nv_lshlrev_b32 {self.vT16}, 4, v0\nv_readfirstlane_b32 {self.sW}, {t}")
        k.v.free(t)
        t0, t1 = self.t0, self.t1
        k(f"s_and_b32 {t0}, s2, 7\ns_lshr_b32 {t1}, s2, 3\ns_lshl_b32 {self.sTB}, {t0}, 5\ns_add_u32 {self.sTB}, {self.sTB}, {t1}")
        k(f"s_and_b32 {self.sM}, {t0}, 1\ns_lshl_b32 {self.sM}, {self.sM}, 2\ns_and_b32 {self.t2}, {t1}, 3\ns_add_u32 {self.sM}, {self.sM}, {self.t2}")
        k(f"s_lshr_b32 {self.sJN}, {t1}, 2\ns_lshr_b32 {t0}, {t0}, 1")
        k(f"s_mul_i32 {self.sN1}, {t0}, 7\ns_min_u32 {t1}, {self.sJN}, 6\ns_add_u32 {self.sN1}, {self.sN1}, {t1}")
        k(f"s_lshl_b32 {self.sN2}, {t0}, 3\ns_xor_b32 {t1}, {self.sJN}, {self.o.get('n2x', 4)}\ns_add_u32 {self.sN2}, {self.sN2}, {t1}")
        k(f"s_mul_i32 {self.sTBo}, {self.sTB}, {BS}\ns_lshl_b32 {self.sTB8}, {self.sTB}, 13")
        self.sTag = k.s(); self.b2 = k.s(); self.m0_keep = None
        self.sOneLo, self.sOneHi = self.P[14], self.P[15]
        self.set_sent(self.XP[0:4])

    def set_sent(self, r):
        self.sent = r
        for i in range(4): self.k(f"v_mov_b32 {r[i]}, -1")
    def init_buf(self, nm):
        k = self.k
        for h in range(2):
            yield 's'
            k(f"s_add_u32 {self.b1}, {self.sTB8 if nm[0] in 'HG' else self.sTBo}, {WS[nm] + h*4096}")
            yield 'v'
            self.init_tok = self.vmem(f"buffer_store_dwordx4 {self.sent}, {self.vT16}, {self.rWS}, {self.b1} offen sc1")
        if nm == 'Y2': self.y2_tok = self.init_tok
        self.pend_init = max(0, self.pend_init - 1)

    def fw(self, hop): return self.o.get('fw_u', 64) if hop[0] == 'U' else 128
    def flag_set(self, hop, d4, off):
        k = self.k
        lg = {32: 1, 64: 2, 128: 3}[self.fw(hop)]
        k(f"v_mov_b32 {d4[0]}, {self.sTag}\nv_lshrrev_b32 {off}, {lg}, v0\nv_lshl_add_u32 {off}, {off}, 25, {self.vT16}")
        if hop[0] == 'U': k(f"s_mul_i32 {self.t0}, {self.sTB}, {self.fw(hop)}")
        else: k(f"s_lshl_b32 {self.t0}, {self.sM}, 5\ns_add_u32 {self.t0}, {self.t0}, {self.sN1 if hop[0] == 'G' else self.sN2}\ns_lshl_b32 {self.t0}, {self.t0}, 7")
        k(f"s_add_u32 {self.t0}, {self.t0}, {WS['FL'] + HOPS.index(hop)*32768}")
        self.vmem(f"buffer_store_dwordx4 {d4}, {off}, {self.rWS}, {self.t0} offen sc1")
    def flag_addr(self, hop, fa, t):
        k = self.k
        fs = k.s()
        base = WS['FL'] + HOPS.index(hop)*32768
        w = self.fw(hop)
        if hop[0] == 'U':
            k(f"v_bfe_u32 {fa}, v0, 5, 1\nv_and_b32 {t}, 31, v0\nv_lshl_add_u32 {fa}, {fa}, 7, {t}\nv_mul_u32_u24 {fa}, {w}, {fa}\ns_mul_i32 {fs}, {self.sW}, {32*w}\ns_add_u32 {fs}, {fs}, {base}")
        elif hop[0] == 'Z':
            k(f"v_and_b32 {fa}, 1, v0\nv_lshlrev_b32 {fa}, 14, {fa}\ns_lshl_b32 {fs}, {self.sW}, 5\ns_lshr_b32 {self.t0}, {self.sTB}, 3\ns_add_u32 {fs}, {fs}, {self.t0}\ns_lshl_b32 {fs}, {fs}, 7\ns_add_u32 {fs}, {fs}, {base}")
        else:
            k(f"v_and_b32 {fa}, 7, v0\nv_min_u32 {fa}, 6, {fa}\nv_lshlrev_b32 {fa}, 7, {fa}\ns_mul_i32 {fs}, {self.sW}, {7*128}\ns_lshl_b32 {self.t0}, {self.sM}, 12\ns_add_u32 {fs}, {fs}, {self.t0}\ns_add_u32 {fs}, {fs}, {base}")
        return fs
    def flag_poll(self, fa, fv, fs):
        return self.vmem(f"buffer_load_dword {fv}, {fa}, {self.rWS}, {fs} offen sc1")
    def flag_wait(self, fa, fv, fs, tok, slp):
        k = self.k
        rt, ok = k.label('frt'), k.label('fok')
        self.vm.wait(tok)
        k(f"v_cmp_ne_u32 vcc, {self.sTag}, {fv}\ns_cbranch_vccnz {rt}\n{ok}:")
        def body():
            lp, fin = k.label('flp'), k.label('ffin')
            k(f"{rt}:\ns_mov_b32 {self.sSpin}, 0\n{lp}:\ns_mov_b64 exec, vcc")
            if slp: k(f"s_sleep {slp}")
            k(f"buffer_load_dword {fv}, {fa}, {self.rWS}, {fs} offen sc1\ns_waitcnt vmcnt(0)\nv_cmp_ne_u32 vcc, {self.sTag}, {fv}")
            k(f"s_add_u32 {self.sSpin}, {self.sSpin}, 1\ns_cmp_ge_u32 {self.sSpin}, {SPIN_MAX}\ns_cbranch_scc1 {fin}\ns_cbranch_vccnz {lp}\n{fin}:\ns_mov_b64 exec, -1\ns_branch {ok}")
        self.outline(body)
        k.s.free(fs)
    def hint_issue(self, hop, fa, fv):
        k = self.k
        fs = self.flag_addr(hop, fa, fv)
        mask = 0x7f if hop[0] == 'G' else 3
        k(f"v_mov_b32 {fv}, {self.sTag}\ns_mov_b64 exec, {mask}\nv_mov_b32 {fv}, 0")
        tok = self.vmem(f"buffer_atomic_or {fv}, {fa}, {self.rWS}, {fs} offen sc0 sc1")
        k("s_mov_b64 exec, -1")
        return (fa, fv, fs, tok)
    def hint_wait(self, st, slp, post):
        k = self.k
        fa, fv, fs, tok = st
        rt, ok = k.label('hrt'), k.label('hok')
        self.vm.wait(tok)
        k(f"v_cmp_ne_u32 vcc, {self.sTag}, {fv}\ns_cbranch_vccnz {rt}\n{ok}:")
        def body():
            lp, fin = k.label('hlp'), k.label('hfin')
            k(f"{rt}:\ns_mov_b32 {self.sSpin}, 0\n{lp}:\ns_mov_b64 exec, vcc")
            if slp: k(f"s_sleep {slp}")
            k(f"v_mov_b32 {fv}, 0\nbuffer_atomic_or {fv}, {fa}, {self.rWS}, {fs} offen sc0 sc1\ns_waitcnt vmcnt(0)\nv_cmp_ne_u32 vcc, {self.sTag}, {fv}")
            k(f"s_add_u32 {self.sSpin}, {self.sSpin}, 1\ns_cmp_ge_u32 {self.sSpin}, {SPIN_MAX}\ns_cbranch_scc1 {fin}\ns_cbranch_vccnz {lp}\n{fin}:\ns_mov_b64 exec, -1")
            if post: k(f"s_sleep {post}")
            k(f"s_branch {ok}")
        self.outline(body)
        k.s.free(fs)
    def settle(self, ptok, key):
        self.vm.wait(ptok)
        self.barrier()
        d = self.o.get('delay', {}).get(key[0])
        if d: self.k(f"s_sleep {d}")
        self.stamp(key + '_set')

    def gather_issue(self, dst, voff, so0, so1):
        self.vmem(f"buffer_load_dwordx4 {dst[0:4]}, {voff}, {self.rWS}, {so0} offen {self.o.get('gfl', 'sc1')}")
        return self.vmem(f"buffer_load_dwordx4 {dst[4:8]}, {voff}, {self.rWS}, {so1} offen {self.o.get('gfl', 'sc1')}")
    def check8(self, d, t):
        k = self.k
        k(f"v_max3_u32 {t}, {d[0]}, {d[1]}, {d[2]}\nv_max3_u32 {t}, {t}, {d[3]}, {d[4]}\nv_max3_u32 {t}, {t}, {d[5]}, {d[6]}\nv_max_u32 {t}, {t}, {d[7]}")
        k(f"v_cmp_eq_u32 vcc, -1, {t}")
    def gather_wait(self, tok, dst, voff, so0, so1, use, tmp=None, check=True):
        k = self.k
        t = tmp or k.v()
        if self.prof: k(f"s_mov_b32 {self.sSpin}, 0")
        for h in range(2):
            d = dst[h*4:h*4+4]
            retry, ok = k.label('gretry'), k.label('gok')
            self.vm.wait(tok - 1 + h if self.o.get('ghalf', 1) else tok)
            chk = f"v_max3_u32 {t}, {d[0]}, {d[1]}, {d[2]}\nv_max_u32 {t}, {t}, {d[3]}\nv_cmp_eq_u32 vcc, -1, {t}"
            if check:
                k(f"{chk}\ns_cbranch_vccnz {retry}\n{ok}:")
                def body():
                    lp = k.label('glp'); fin = k.label('gfin')
                    k(f"{retry}:\ns_mov_b32 {self.sSpin}, 0\n{lp}:\ns_mov_b64 exec, vcc")
                    k(f"buffer_load_dwordx4 {d}, {voff}, {self.rWS}, {(so0, so1)[h]} offen sc1")
                    if h == 0:
                        k(f"s_mov_b64 exec, -1\ns_waitcnt vmcnt(1)\nv_max3_u32 {t}, {dst[4]}, {dst[5]}, {dst[6]}\nv_max_u32 {t}, {t}, {dst[7]}\nv_cmpx_eq_u32 vcc, -1, {t}")
                        sk = k.label('gsk')
                        k(f"s_cbranch_execz {sk}\nbuffer_load_dwordx4 {dst[4:8]}, {voff}, {self.rWS}, {so1} offen sc1\n{sk}:\ns_mov_b64 exec, -1")
                    k(f"s_waitcnt vmcnt(0)\n{chk}")
                    k(f"s_add_u32 {self.sSpin}, {self.sSpin}, 1\ns_cmp_ge_u32 {self.sSpin}, {SPIN_MAX}\ns_cbranch_scc1 {fin}")
                    k(f"s_cbranch_vccnz {lp}\n{fin}:\ns_mov_b64 exec, -1\ns_branch {ok}")
                self.outline(body)
            use(h)
        if check: self.count('gather')
        if not tmp: k.v.free(t)

    def ln_addr(self, redoff):
        k = self.k
        a = k.v(2, 1)
        k(f"v_and_b32 {a[0]}, 60, v0\nv_add_lshl_u32 {a[0]}, {a[0]}, {self.sW}, 2\nv_and_b32 {a[1]}, 0x70, {self.vT16}")
        self.redoff = redoff
        return a
    def ln_begin(self):
        self.lnq = self.k.v(8, 2); self.lnq_done = False
    def add_half(self, x, g, h):
        k = self.k
        if self.o.get('dot2', 1):
            for i in range(4):
                k(f"v_dot2c_f32_bf16 {x[h*8+2*i]}, {self.sOneLo}, {g[h*4+i]}\nv_dot2c_f32_bf16 {x[h*8+2*i+1]}, {self.sOneHi}, {g[h*4+i]}")
        else:
            t = k.v(8, 2)
            self.unpack(t, g[h*4:h*4+4], 4)
            for i in range(0, 8, 2): k(f"v_pk_add_f32 {x[h*8+i:h*8+i+2]}, {x[h*8+i:h*8+i+2]}, {t[i:i+2]}")
            k.v.free(t)
        if h == 0:
            for i in range(0, 8, 2): k(f"v_pk_mul_f32 {self.lnq[i:i+2]}, {x[i:i+2]}, {x[i:i+2]}")
            self.lnq_done = True
    def layernorm(self, x, double, a, prebar=None, spare=()):
        k = self.k
        s = k.v(8, 2); q = self.lnq
        spare = list(spare)
        def gap(n):
            for _ in range(n):
                if spare: k(spare.pop(0))
        if not self.lnq_done:
            for i in range(0, 8, 2): k(f"v_pk_mul_f32 {q[i:i+2]}, {x[i:i+2]}, {x[i:i+2]}")
        for i in range(0, 8, 2):
            k(f"v_pk_add_f32 {s[i:i+2]}, {x[i:i+2]}, {x[8+i:10+i]}")
        for i in range(0, 8, 2):
            k(f"v_pk_fma_f32 {q[i:i+2]}, {x[8+i:10+i]}, {x[8+i:10+i]}, {q[i:i+2]}")
        for i in range(8): k(f"v_permlane32_swap_b32 {s[i]}, {q[i]}")
        for i in (0, 4, 2, 6): k(f"v_pk_add_f32 {s[i:i+2]}, {s[i:i+2]}, {q[i:i+2]}")
        for i in range(4): k(f"v_permlane16_swap_b32 {s[i]}, {s[i+4]}")
        for i in range(0, 4, 2): k(f"v_pk_add_f32 {s[i:i+2]}, {s[i:i+2]}, {s[i+4:i+6]}")
        gap(1)
        k(f"v_add_f32_dpp {q[0]}, {s[0]}, {s[0]} row_ror:8 row_mask:0xf bank_mask:0x3")
        k(f"v_add_f32_dpp {q[1]}, {s[1]}, {s[1]} row_ror:8 row_mask:0xf bank_mask:0x3")
        gap(1)
        k(f"v_add_f32_dpp {q[0]}, {s[2]}, {s[2]} row_ror:8 row_mask:0xf bank_mask:0xc")
        k(f"v_add_f32_dpp {q[1]}, {s[3]}, {s[3]} row_ror:8 row_mask:0xf bank_mask:0xc")
        gap(1)
        k(f"v_add_f32_dpp {s[0]}, {q[0]}, {q[0]} row_shl:4 row_mask:0xf bank_mask:0x5")
        gap(2)
        k(f"v_add_f32_dpp {s[0]}, {q[1]}, {q[1]} row_shr:4 row_mask:0xf bank_mask:0xa")
        gap(2)
        k(f"v_add_f32_dpp {s[0]}, {s[0]}, {s[0]} quad_perm:[1,0,3,2] row_mask:0xf bank_mask:0xf")
        gap(2)
        k(f"v_add_f32_dpp {s[0]}, {s[0]}, {s[0]} quad_perm:[2,3,0,1] row_mask:0xf bank_mask:0xf")
        self.ds(f"ds_write_b32 {a[0]}, {s[0]} offset:{self.redoff}")
        n0 = len(k.lines)
        if prebar: prebar()
        gap(100)
        self.filler(self.o.get('fill_a', 8) - (len(k.lines) - n0), s[7])
        self.barrier()
        self.ds(f"ds_read_b128 {s[0:4]}, {a[1]} offset:{self.redoff}")
        tk = self.ds(f"ds_read_b128 {q[0:4]}, {a[1]} offset:{self.redoff + 128}")
        self.filler(self.o.get('fill_b', 10), s[7])
        self.lg.wait(tk)
        k(f"v_pk_add_f32 {s[0:2]}, {s[0:2]}, {s[2:4]}\nv_pk_add_f32 {q[0:2]}, {q[0:2]}, {q[2:4]}")
        u = k.v(16, 2)
        mean, var, r = u[0], u[1], u[2]
        k(f"v_add_f32 {mean}, {s[0]}, {s[1]}\nv_add_f32 {var}, {q[0]}, {q[1]}")
        k(f"v_mul_f32 {mean}, {f2h(1/512)}, {mean}\nv_mul_f32 {var}, {f2h(1/512)}, {var}")
        k(f"v_fma_f32 {var}, -{mean}, {mean}, {var}\nv_max_f32 {var}, 0, {var}\nv_add_f32 {r}, {f2h(1e-5)}, {var}")
        if double: k(f"v_fmamk_f32 {r}, {r}, {f2h(1e-5)}, {var}")
        k(f"v_rsq_f32 {r}, {r}\nv_mul_f32 {mean}, -{mean}, {r}")
        for j in range(8): k(f"v_mov_b32_dpp {s[j]}, {r} row_newbcast:{j} row_mask:0xf bank_mask:0xf")
        for j in range(8): k(f"v_mov_b32_dpp {q[j]}, {mean} row_newbcast:{j} row_mask:0xf bank_mask:0xf")
        for j in range(0, 16, 2):
            k(f"v_pk_fma_f32 {u[j:j+2]}, {x[j:j+2]}, {s[j & 7:(j & 7) + 2]}, {q[j & 7:(j & 7) + 2]}")
        k.v.free(s, q, a)
        return u
    def pack16(self, dst, src, lo=0, hi=8):
        for i in range(lo, hi): self.k(f"v_cvt_pk_bf16_f32 {dst[i]}, {src[2*i]}, {src[2*i+1]}")
    def unpack_add(self, x, p):
        k = self.k
        t = k.v(16, 2)
        self.unpack(t, p)
        for i in range(8):
            k(f"v_pk_add_f32 {x[2*i:2*i+2]}, {x[2*i:2*i+2]}, {t[2*i:2*i+2]}")
        k.v.free(t)
    def unpack(self, x, p, n=8):
        for i in range(n):
            self.k(f"v_lshlrev_b32 {x[2*i]}, 16, {p[i]}\nv_and_b32 {x[2*i+1]}, 0xffff0000, {p[i]}")
    def blk_off(self, buf):
        k = self.k
        so = k.s(2)
        k(f"s_add_u32 {so[0]}, {self.sTBo}, {WS[buf]}\ns_add_u32 {so[1]}, {so[0]}, 4096")
        return so
    def store_half(self, p, h, vo, so):
        return self.vmem(f"buffer_store_dwordx4 {p[h*4:h*4+4]}, {vo}, {self.rWS}, {so[h]} offen {self.o.get('sfl', 'sc1')}")
    def load_dskip(self):
        k = self.k
        dsk = k.v(2, 2); a = k.v()
        k(f"v_mov_b32 {dsk[0]}, 0\nv_mov_b32 {dsk[1]}, 0\nv_lshlrev_b32 {a}, 1, v0")
        self.vmem(f"global_load_short_d16_hi {dsk[0]}, {a}, {self.pDS}")
        tok = self.vmem(f"global_load_short_d16_hi {dsk[1]}, {a}, {self.pDS} offset:512")
        k.v.free(a)
        return dsk, tok
    def ln_to_conv(self, x, dsk, dtok, so, la, prebar=None, hold=None, prepub=None):
        k = self.k
        u = self.layernorm(x, False, la, prebar)
        p = hold or k.v(8, 2); tok = None
        for h in range(2):
            self.pack16(p, u, h*4, h*4+4)
            if prepub: prepub()
            if not hold: tok = self.store_half(p, h, self.vT16, so)
        self.stamp('upub')
        self.vm.wait(dtok)
        for e in range(2):
            for i in range(0, 8, 2):
                j = e*8 + i
                k(f"v_pk_fma_f32 {x[j:j+2]}, {u[j:j+2]}, {dsk}, {x[j:j+2]} op_sel:[0,{e},0] op_sel_hi:[1,{e},1]")
        k.v.free(u, dsk)
        if not hold: k.v.free(p); k.s.free(so)
        return tok

    def w_setup(self):
        k = self.k
        self.sWM = k.s(); self.sX1 = k.s(); self.sQ = [k.s() for _ in range(7)]; self.sB1 = k.s(); self.sB2 = k.s()
        a, b, c = k.v(), k.v(), k.v()
        t0, t1 = self.t0, self.t1
        self.lane(a)
        k(f"v_lshrrev_b32 {b}, 3, {a}\nv_lshrrev_b32 {c}, 2, {a}\nv_and_b32 {c}, 4, {c}\nv_and_b32 {self.wV1}, 7, {a}\nv_xor_b32 {c}, {c}, {self.wV1}")
        k(f"s_lshr_b32 {t0}, {self.sW}, 1\ns_lshl_b32 {t0}, {t0}, 2\nv_xor_b32 {c}, {t0}, {c}\nv_lshlrev_b32 {c}, 4, {c}")
        k(f"v_mul_u32_u24 {self.wV1}, {F*2}, {b}\nv_add_u32 {self.wV1}, {self.wV1}, {c}\nv_lshl_add_u32 {self.wV2}, {b}, 12, {c}")
        k(f"s_lshl_b32 {self.sWM}, {self.sW}, 12\ns_add_u32 {self.sWM}, {self.sWM}, {WB}")
        k(f"s_mul_i32 {self.sB1}, {self.sW}, {32*16*F*2}\ns_lshl_b32 {t0}, {self.sN1}, 7\ns_add_u32 {self.sB1}, {self.sB1}, {t0}")
        k(f"s_mul_i32 {self.sB2}, {self.sW}, {28*65536}\ns_lshl_b32 {t0}, {self.sN2}, 7\ns_add_u32 {self.sB2}, {self.sB2}, {t0}")
        def lut(dst, src, tab):
            lo = sum(tab[i] << (8*i) for i in range(4)); hi = sum(tab[4+i] << (8*i) for i in range(4))
            k(f"s_mov_b32 {self.sRet[0]}, {hex(lo)}\ns_mov_b32 {self.sRet[1]}, {hex(hi)}\ns_lshl_b32 {dst}, {src}, 3\ns_lshr_b64 {self.sRet}, {self.sRet}, {dst}\ns_and_b32 {dst}, {self.sRet[0]}, 0xff")
        o = self.o
        lut(self.sX1, self.sJN, o.get('x1n', [0] * 8))
        x1m = o.get('x1m', [0, 8, 16, 24, 4, 12, 20, 28])
        if any(x1m):
            lut(t0, self.sM, x1m); k(f"s_xor_b32 {self.sX1}, {self.sX1}, {t0}")
        lut(t0, self.sJN, o.get('r2n', [0] * 8))
        r2m = o.get('r2m', [0, 2, 4, 6] * 2)
        if any(r2m):
            lut(t1, self.sM, r2m); k(f"s_add_u32 {t0}, {t0}, {t1}\ns_sub_u32 {t1}, {t0}, 7\ns_cmp_ge_u32 {t0}, 7\ns_cselect_b32 {t0}, {t1}, {t0}")
        k(f"s_lshl_b32 {self.sQ[0]}, {t0}, 12")
        if o.get('par2', 1): k(f"s_and_b32 {t1}, s2, 1\ns_lshl_b32 {t1}, {t1}, 16\ns_add_u32 {self.sB2}, {self.sB2}, {t1}")
        self.sMi = k.s()
        if o.get('flip', 0): k(f"s_xor_b32 {self.sMi}, {self.sW}, {self.sJN}\ns_and_b32 {self.sMi}, {self.sMi}, 1")
        else: k(f"s_and_b32 {self.sMi}, {self.sW}, 1")
        for g in range(1, 7):
            k(f"s_add_u32 {self.sQ[g]}, {self.sQ[g-1]}, 4096\ns_cmp_eq_u32 {self.sQ[g]}, {7*4096}\ns_cselect_b32 {self.sQ[g]}, 0, {self.sQ[g]}")
        self.w_abc = (a, b, c)
        self.w_issued = 0; self.w_drained = 0; self.w_tok = {}; self.w_rtok = {}
        self.slot_of = {}; self.slot_user = {}; self.slot_log = {}
        self.slots = [2, 3, 4, 5, 6]
        p2 = o.get('early2', (2, 2))
        self.seq = list(range(p2[0])) + list(range(16, 16 + p2[1])) + list(range(p2[0], 16)) + list(range(16 + p2[1], 30))
        for j in range(1, 4): k(f"v_add_u32 {self.wv1[j]}, {j*8*F*2 - j*1024}, {self.wV1}")
        self.v2_done = False; self.ta_ready = False
        self.qd.q = [self.w_drain] * 23
    def w_setup2(self):
        k = self.k
        a, b, c = self.w_abc
        t = self.ta[0]
        k(f"v_lshrrev_b32 {b}, 5, {a}\nv_lshlrev_b32 {t}, 10, {b}")
        k(f"v_bfe_u32 {b}, {a}, 2, 2\nv_lshl_add_u32 {t}, {b}, 7, {t}")
        k(f"v_bfe_u32 {b}, {a}, 3, 1\nv_lshl_add_u32 {t}, {b}, 6, {t}")
        k(f"v_bfe_u32 {b}, {a}, 4, 1\nv_lshl_add_u32 {t}, {b}, 5, {t}")
        k(f"v_bfe_u32 {b}, {a}, 0, 1\nv_lshl_add_u32 {t}, {b}, 4, {t}")
        k(f"v_bfe_u32 {b}, {a}, 1, 1\nv_lshl_add_u32 {t}, {b}, 3, {t}")
        k(f"v_add_u32 {t}, {self.sWM}, {t}\nv_xor_b32 {self.ta[1]}, 64, {t}\nv_add_u32 {self.ta[2]}, 0x10000, {t}\nv_xor_b32 {self.ta[3]}, 64, {self.ta[2]}")
        self.ta_ready = True
        k.v.free(a, b, c)
    def w_voff2(self):
        for j, r in ((1, 8), (2, 32), (3, 40)):
            yield 's'
            self.k(f"v_add_u32 {self.wv2[j]}, {r*4096 - j*1024}, {self.wV2}")
        self.v2_done = True
    def w_state(self):
        import copy
        return (self.w_issued, self.w_drained, dict(self.slot_user), dict(self.slot_of), dict(self.w_tok), dict(self.w_rtok), list(self.hiv.used),
                self.vm.n, self.vm.done, self.lg.n, self.lg.done, list(self.k.v.used), self.vgap)
    def w_restore(self, st):
        (self.w_issued, self.w_drained, self.slot_user, self.slot_of, self.w_tok, self.w_rtok, self.hiv.used,
         self.vm.n, self.vm.done, self.lg.n, self.lg.done, self.k.v.used, self.vgap) = st
        self.qd = Q(); self.qd.q = [self.w_drain] * (23 - self.w_drained)
    def free_slots(self):
        return [s for s in self.slots if s not in self.slot_user or self.slot_user[s] < self.w_drained]
    def w_issue(self):
        k = self.k
        yield 'slot'
        i = self.w_issued
        assert i < 30
        free = self.free_slots()
        sl = min(free, key=lambda s: self.slot_user.get(s, -1))
        assert self.slot_log.setdefault(i, sl) == sl
        prev = self.slot_user.get(sl)
        self.slot_user[sl] = i; self.slot_of[i] = sl
        b0 = self.b0
        it = self.seq[i]
        if it < 16:
            k(f"s_xor_b32 {b0}, {self.sX1}, {2*it}"); yield 's'
            k(f"s_mul_i32 {b0}, {b0}, {16*F*2}"); yield 's'
            k(f"s_add_u32 {b0}, {b0}, {self.sB1}"); yield 's'
        else:
            assert self.v2_done
            g = (it - 16) % 7
            k(f"s_lshl_b32 {b0}, {self.sQ[g]}, 6"); yield 's'
            k(f"s_add_u32 {b0}, {b0}, {self.sB2}"); yield 's'
            if it >= 23: k(f"s_xor_b32 {b0}, {b0}, 65536"); yield 's'
        srd, wv = (self.rW1, self.wv1) if it < 16 else (self.rW2, self.wv2)
        have = self.m0_keep is None
        k(f"s_add_u32 {'m0' if have else self.b2}, {self.sWM}, {sl*16384}")
        direct = have
        for j in range(4):
            yield 'v'
            if j == 0 and prev is not None: self.lg.wait(self.w_rtok[prev])
            assert not (direct and self.m0_keep is not None)
            if not have: k(f"s_mov_b32 m0, {self.b2}")
            tok = self.vmem(f"buffer_load_dwordx4 {wv[j]}, {srd}, {b0} offen offset:{j*1024} lds")
            have = self.m0_keep is None
            if not have: k(f"s_mov_b32 m0, {self.m0_keep}")
        self.w_tok[i] = tok; self.w_time[i] = self.now
        self.w_issued += 1
        if it == 15: self.hiv.free(*self.wv1)
        if self.w_issued == 30: k.v.free(*self.wv2)
    def w_read1(self, dst, sl, half, j):
        ni, u = j >> 1, j & 1
        return self.ds(f"ds_read_b64_tr_b16 {dst[ni*4+u*2:ni*4+u*2+2]}, {self.ta[ni + 2*(sl >> 2)]} offset:{(sl & 3)*16384 + half*2048 + u*512}")
    def w_drain(self):
        yield 'item'
        i = self.w_drained
        assert i < self.w_issued and i < 23, (i, self.w_issued)
        self.vm.wait(self.w_tok[i])
        it = self.seq[i]
        if it >= 16:
            lo = 144 + (it - 16) * 16
            assert not any(self.hiv.used[lo:lo+16]), ('borrowed register still live', i)
            for j in range(lo, lo + 16): self.hiv.used[j] = True
        dst = self.W1A[it*16:it*16+16] if it < 16 else self.W2V[(it-16)*16:(it-16)*16+16]
        for j in range(8):
            if j: yield 'd'
            tk = self.w_read1(dst[(j >> 2)*8:(j >> 2)*8+8], self.slot_of[i], j >> 2, j & 3)
        self.w_rtok[i] = tk
        self.w_drained += 1
    def touch(self, what):
        k = self.k
        a, b = self.hialloc(1), self.hialloc(1)
        def seq(text):
            for ln in text.split('\n'):
                yield 's'
                k(ln)
        if what in ('2a', '2b', '2'):
            yield from seq(f"s_lshr_b32 {self.b1}, s2, 3\ns_mul_i32 {self.b1}, {self.b1}, 28\nv_min_u32 {a}, 223, v0\nv_lshrrev_b32 {a}, 3, {a}\nv_add_u32 {a}, {self.b1}, {a}")
            yield from seq(f"v_and_b32 {b}, 0xfff0, {a}\nv_add_u32 {a}, {a}, {b}\nv_lshlrev_b32 {a}, 12, {a}\nv_and_b32 {b}, 7, v0\nv_lshl_add_u32 {a}, {b}, 7, {a}")
            yield from seq(f"s_bfe_u32 {self.b1}, s2, 0x20001\ns_lshl_b32 {self.b1}, {self.b1}, 10" + (f"\ns_add_u32 {self.b1}, {self.b1}, 65536" if what == '2b' else ''))
            yield 'v'
            self.touch_tok = self.vmem(f"buffer_load_dword {self.XP[6]}, {a}, {self.rW2}, {self.b1} offen")
            if what == '2':
                yield from seq(f"s_add_u32 {self.b1}, {self.b1}, 65536")
                yield 'v'
                self.touch_tok = self.vmem(f"buffer_load_dword {self.XP[6]}, {a}, {self.rW2}, {self.b1} offen")
        elif what[0] == 'h':
            mat = int(what[1]); part = what[2:]
            st_, nr, wd = (F*2, 32, 896) if mat == 1 else (4096, 28, 1024)
            yield from seq(f"s_and_b32 {self.b1}, s2, 1\ns_lshl_b32 {self.b1}, {self.b1}, 5\ns_lshr_b32 {self.b2}, s2, 3\ns_add_u32 {self.b1}, {self.b1}, {self.b2}\ns_mul_i32 {self.b1}, {self.b1}, {nr*st_}")
            yield from seq(f"s_bfe_u32 {self.b2}, s2, 0x20001\ns_mul_i32 {self.b2}, {self.b2}, {wd}\ns_add_u32 {self.b1}, {self.b1}, {self.b2}")
            yield from seq(f"v_lshrrev_b32 {a}, 3, v0\nv_min_u32 {a}, {nr-1}, {a}\nv_mul_u32_u24 {a}, {st_}, {a}\nv_and_b32 {b}, 7, v0\nv_min_u32 {b}, {wd//128 - 1}, {b}\nv_lshl_add_u32 {a}, {b}, 7, {a}")
            if part:
                yield from seq(f"v_bfe_u32 {b}, v0, 3, 1" + (f"\nv_xor_b32 {b}, 1, {b}" if part == '1' else '') + f"\nv_lshl_add_u32 {a}, {b}, 30, {a}")
            yield 'v'
            self.touch_tok = self.vmem(f"buffer_load_dword {self.XP[6]}, {a}, {self.rW1 if mat == 1 else self.rW2}, {self.b1} offen")
        else:
            yield from seq(f"s_lshr_b32 {self.b1}, s2, 3\ns_mul_i32 {self.b1}, {self.b1}, {64*F*2}\ns_bfe_u32 {self.b0}, s2, 0x20001\ns_mul_i32 {self.b0}, {self.b0}, 896\ns_add_u32 {self.b1}, {self.b1}, {self.b0}")
            yield from seq(f"v_lshrrev_b32 {a}, 3, v0\nv_mul_u32_u24 {a}, {F*2}, {a}\nv_and_b32 {b}, 7, v0\nv_min_u32 {b}, 6, {b}\nv_lshl_add_u32 {a}, {b}, 7, {a}")
            yield 'v'
            self.vmem(f"buffer_load_dword {self.XP[6]}, {a}, {self.rW1}, {self.b1} offen")
            yield from seq(f"s_add_u32 {self.b1}, {self.b1}, {32*F*2}")
            yield 'v'
            self.touch_tok = self.vmem(f"buffer_load_dword {self.XP[6]}, {a}, {self.rW1}, {self.b1} offen")
        self.hiv.free(a, b)
    def code_touch(self):
        k = self.k
        a = k.v()
        for ln in f"s_lshr_b32 {self.b1}, s2, 3\ns_lshl_b32 {self.b1}, {self.b1}, 11\nv_lshl_add_u32 {a}, v0, 3, {self.b1}\nv_min_u32 {a}, {k.name}_codeend-{self.lpc}-8, {a}".split('\n'):
            yield 's'
            k(ln)
        yield 'v'
        self.ct = (a, self.vmem(f"global_load_dword {a}, {a}, {self.sPC}"))
    def ct_release(self):
        if getattr(self, 'ct', None):
            assert self.ct[1] <= self.vm.done
            self.k.v.free(self.ct[0]); self.ct = None
    def idle_touch(self, r):
        k = self.k
        a, b, d = r[0], r[1], r[2]
        k(f"s_and_b32 {self.b1}, {self.sM}, 3\ns_mul_i32 {self.b1}, {self.b1}, {14*32*4096}\ns_bfe_u32 {self.b0}, s2, 0x20001\ns_lshl_b32 {self.b0}, {self.b0}, 10\ns_add_u32 {self.b1}, {self.b1}, {self.b0}")
        if self.o.get('idle_touch', 0) == 1: k(f"s_add_u32 {self.b1}, {self.b1}, 65536")
        else: k(f"s_and_b32 {self.b0}, s2, 1\ns_lshl_b32 {self.b0}, {self.b0}, 16\ns_add_u32 {self.b1}, {self.b1}, {self.b0}")
        k(f"v_lshrrev_b32 {a}, 3, v0\nv_and_b32 {b}, 16, {a}\nv_add_u32 {a}, {a}, {b}\nv_lshlrev_b32 {a}, 12, {a}\nv_and_b32 {b}, 7, v0\nv_lshl_add_u32 {a}, {b}, 7, {a}")
        for i in range(7):
            self.vmem(f"buffer_load_dword {d}, {a}, {self.rW2}, {self.b1} offen")
            k(f"s_add_u32 {self.b1}, {self.b1}, {64*4096}")
    def hialloc(self, n, al=None):
        A = self.hiv
        al = al or (1 if n == 1 else 2)
        lo = (256 - n) // al * al
        while any(A.used[lo:lo+n]):
            lo -= al
            assert lo >= 144
        for j in range(lo, lo + n): A.used[j] = True
        return Reg('v', lo, n)

    def kgen_load(self):
        k = self.k
        self.kp = k.v(5, 2); a = k.v(); b = k.v()
        for i in range(5): k(f"v_mov_b32 {self.kp[i]}, 0")
        k(f"s_lshl_b32 {self.t0}, {self.sTB}, 9\nv_lshl_add_u32 {a}, v0, 1, {self.t0}")
        k(f"s_lshl_b32 {self.t0}, {self.sTB}, 2\nv_lshrrev_b32 {b}, 7, v0\nv_lshl_add_u32 {b}, {b}, 1, {self.t0}")
        self.kp_ab = (a, b)
    def kgen_load2(self):
        a, b = self.kp_ab
        for i, p in enumerate([self.pLA, self.pAI, self.pCR, self.pCI]):
            self.vmem(f"global_load_short_d16_hi {self.kp[i]}, {a}, {p}")
        self.kp_tok = self.vmem(f"global_load_short_d16_hi {self.kp[4]}, {b}, {self.pDT}")
        self.k.v.free(a, b)
    def kgen_addr(self):
        k = self.k
        H = self.hialloc
        aa, ab, c, tie = [H(1) for _ in range(4)]
        t, t1, base, hh = k.v(), k.v(), k.v(), k.v()
        t0, s1, t2 = self.t0, self.t1, self.t2
        self.sTM = k.s()
        k(f"s_lshr_b32 {t0}, {self.sW}, 1\ns_and_b32 {s1}, {self.sW}, 1\ns_mul_i32 {t2}, {t0}, {TCS}\ns_lshl_b32 {self.sTM}, {s1}, 8\ns_add_u32 {self.sTM}, {self.sTM}, {t2}")
        k(f"v_bfe_u32 {hh}, v0, 5, 1\nv_lshl_add_u32 {t1}, {hh}, 4, {t2}\nv_and_b32 {t}, 31, v0\nv_mul_u32_u24 {ab}, {TROW}, {t}\nv_add_u32 {ab}, {ab}, {t1}")
        k(f"s_mul_i32 {t0}, {t0}, {KCH}\ns_lshl_b32 {t2}, {s1}, 11\ns_sub_u32 {t0}, {t0}, {t2}\ns_add_u32 {t0}, {t0}, {4080 - 1024}")
        k(f"v_and_b32 {c}, 0x3f0, {self.vT16}\nv_sub_u32 {c}, {t0}, {c}\nv_and_b32 {tie}, {s1}, v0")
        rho = [[0,1,2,3,4,5,6,7], [8,8,9,10,10,10,11,12], [13,13,13,14,14,14,15,15], [16,16,16,17,17,17,18,18]] + [[19+2*j]*5 + [20+2*j]*3 for j in range(4)]
        def word(tile, g):
            v = 0
            for r in range(4):
                i = 4*g + r
                v |= rho[4*tile + 2*(i >> 4) + ((i >> 2) & 1)][4*((i >> 3) & 1) + (i & 3)] << (8*r)
            return v
        k(f"s_cmp_eq_u32 {s1}, 0")
        for g in range(8):
            k(f"s_mov_b32 {t0}, {hex(word(1, g))}\ns_cmov_b32 {t0}, {hex(word(0, g))}\nv_writelane_b32 {base}, {t0}, {g}")
        k(f"v_and_b32 {t}, 28, v0")
        tk = self.ds(f"ds_bpermute_b32 {base}, {t}, {base}")
        k(f"v_and_b32 {t}, 3, v0\nv_lshlrev_b32 {t}, 3, {t}")
        self.lg.wait(tk)
        k(f"v_bfe_u32 {base}, {base}, {t}, 8\nv_mul_u32_u24 {aa}, {TROW}, {base}\nv_add_u32 {aa}, {aa}, {t1}")
        k.v.free(t, t1, base, hh)
        self.ka = (aa, ab, c, tie)
    def kgen_tables(self, events):
        k = self.k
        la, ai, cr, ci, dt = [self.kp[i] for i in range(5)]
        t = k.v(2, 2)
        self.vm.wait(self.kp_tok)
        self.stamp('par')
        k(f"v_mul_f32 {la}, {f2h(LOG2E)}, {la}\nv_mul_f32 {dt}, {f2h(LOG2E)}, {dt}\nv_exp_f32 {la}, {la}\nv_exp_f32 {dt}, {dt}")
        k(f"v_cvt_pk_bf16_f32 {t[0]}, {la}, {dt}\nv_lshlrev_b32 {la}, 16, {t[0]}\nv_and_b32 {dt}, 0xffff0000, {t[0]}")
        k(f"v_mul_f32 {la}, {la}, {dt}\nv_mul_f32 {ai}, {ai}, {dt}\nv_add_f32 {dt}, {dt}, {dt}")
        k(f"v_mul_f32 {la}, {f2h(-LOG2E)}, {la}\nv_mul_f32 {ai}, {f2h(1/(2*math.pi))}, {ai}")
        b = [k.v(2, 2) for _ in range(9)]
        k(f"v_mul_f32 {b[0][0]}, {cr}, {dt}\nv_mul_f32 {b[0][1]}, {ci}, {dt}")
        zs = {p: k.v(2, 2) for p in (1, 8, 256, 128)}
        def pw(p, tt):
            d = zs[p]
            for ins in (f"v_mul_f32 {tt[1]}, {f2h(float(p))}, {ai}", f"v_mul_f32 {tt[0]}, {f2h(float(p))}, {la}", f"v_fract_f32 {tt[1]}, {tt[1]}", f"v_exp_f32 {tt[0]}, {tt[0]}",
                        f"v_cos_f32 {d[0]}, {tt[1]}", f"v_sin_f32 {d[1]}, {tt[1]}", f"v_pk_mul_f32 {d}, {d}, {tt} op_sel_hi:[1,0]"):
                k(ins); yield
        roundrobin([pw(1, b[1]), pw(8, b[2]), pw(256, b[3]), pw(128, b[4])])
        z1, z8, z256, z128 = zs[1], zs[8], zs[256], zs[128]
        def cmul(d, a_, b_):
            k(f"v_pk_mul_f32 {d}, {a_}, {b_} op_sel_hi:[1,0]"); yield
            k(f"v_pk_fma_f32 {d}, {a_}, {b_}, {d} op_sel:[1,1,0] op_sel_hi:[0,1,1] neg_lo:[0,1,0]"); yield
        def wr(p, off, v, neg):
            k(f"v_cvt_pk_bf16_f32 {p}, {v[0]}, {'-' if neg else ''}{v[1]}"); yield
            self.ds(f"ds_write_addtid_b32 {p} offset:{off}"); yield
        def chainY(row0, start):
            cur = start; alt = [k.v(2, 2), k.v(2, 2)]; p = k.v()
            for r in range(16):
                if r == 0 and row0 == 0:
                    k(f"v_mov_b32 {p}, 0x3f80"); yield
                    self.ds(f"ds_write_addtid_b32 {p}"); yield
                    continue
                if not (r == 0 or (r == 1 and row0 == 0)):
                    nx = alt[r & 1]
                    yield from cmul(nx, cur, z8); cur = nx
                yield from wr(p, (row0 + r) * TROW, cur, False)
            self.kfree += alt + [p]
        def chainX1():
            p = k.v()
            wx = lambda row, v: wr(p, WB + row * TROW, v, True)
            yield from wx(0, b[0])
            for r in range(1, 8):
                yield from cmul(b[r], b[r-1], z1)
                yield from wx(r, b[r])
            yield from cmul(b[1], b[2], z256); yield from wx(9, b[1])
            yield from cmul(b[3], b[6], z256); yield from wx(11, b[3])
            yield from cmul(b[5], b[4], z256); yield from wx(10, b[5])
            yield from cmul(b[4], b[5], z256); yield from wx(14, b[4])
            yield from cmul(b[5], b[4], z256); yield from wx(17, b[5])
            self.kfree.append(p)
        def chainX2():
            p = k.v(); e = [k.v(2, 2) for _ in range(3)]
            wx = lambda row, v: wr(p, WB + row * TROW, v, True)
            yield from cmul(b[8], b[0], z8)
            A0, A8 = b[0], b[8]; spare = [e[0], e[1], e[2]]
            for lvl, (r0, r8) in enumerate([(8, 12), (13, 15), (16, 18), (19, 20), (21, 22), (23, 24), (25, 26)]):
                n0 = spare.pop(0)
                yield from cmul(n0, A0, z256); yield from wx(r0, n0)
                if lvl > 0: spare.append(A0)
                A0 = n0
                n8 = spare.pop(0)
                yield from cmul(n8, A8, z256); yield from wx(r8, n8)
                spare.append(A8); A8 = n8
            self.kfree += e + [p]
        self.kfree = []
        assert self.qv.cur is None
        self.m0_keep = self.sTM
        k(f"s_mov_b32 m0, {self.sTM}")
        def after(n):
            if n % 3 == 0: self.bg(1, 15)
            if n in events: events[n]()
        roundrobin([chainX1(), chainY(0, z8), chainX2(), chainY(16, z128)], after=after)
        self.m0_keep = None
        k.v.free(t, self.kp, *zs.values(), *b, *self.kfree); k.s.free(self.sTM)
    def zero_regs(self):
        z = self.k.v(4, 2)
        for i in range(4): self.k(f"v_mov_b32 {z[i]}, 0")
        return z
    def zero_pads(self, z):
        k = self.k
        a = k.v(); b = k.v()
        k(f"v_bfe_u32 {b}, v0, 5, 1\nv_mul_u32_u24 {b}, {UCS}, {b}\nv_and_b32 {a}, 31, v0\nv_lshl_add_u32 {b}, {a}, 4, {b}")
        self.ds(f"ds_write_b128 {b}, {z} offset:{UB}")
        k.v.free(a, b)
    def ktail_addr(self, b):
        k = self.k
        a = k.v()
        k(f"v_bfe_u32 {b}, v0, 2, 3\nv_mul_u32_u24 {b}, {KCS}, {b}\nv_and_b32 {a}, 3, v0\nv_lshl_add_u32 {b}, {a}, 4, {b}")
        k.v.free(a)
    def kgen_mfma(self, mid):
        k = self.k
        aa, ab, c, tie = self.ka
        ad = self.vT16
        z, zt = self.kz
        mid('A')
        self.barrier()
        acc = k.v(16, 2)
        NB = 4
        fa = [k.v(4, 2) for _ in range(NB)]; fb = [k.v(4, 2) for _ in range(NB)]
        tok = {}
        def ld(s):
            self.ds(f"ds_read_b128 {fa[s % NB]}, {aa} offset:{WB + s*32}")
            tok[s] = self.ds(f"ds_read_b128 {fb[s % NB]}, {ab} offset:{s*32}")
        for s in range(NB): ld(s)
        for s in range(16):
            self.lg.wait(tok[s])
            k(f"v_mfma_f32_32x32x16_bf16 {acc}, {fa[s % NB]}, {fb[s % NB]}, {0 if s == 0 else acc}")
            if s + NB < 16: ld(s + NB)
            if s == 8: mid('M')
            self.bg(2, 32)
        k("s_barrier")
        self.slots = list(range(7))
        self.ds(f"ds_write_b128 {zt}, {z} offset:4096")
        mid('B')
        k(f"v_cmp_ne_u32 vcc, 0, {tie}")
        for g in range(2):
            k(f"v_cndmask_b32 {acc[g*8+4]}, {acc[g*8+4]}, {acc[g*8+5]}, vcc")
            for i in range(4):
                k(f"v_cvt_pk_bf16_f32 {fa[g][i]}, {acc[g*8+7-2*i]}, {acc[g*8+6-2*i]}")
            self.ds(f"ds_write_b128 {c}, {fa[g]} offset:{1024 - g*1024}")
        k.v.free(acc, *fa, *fb)
        self.hiv.free(aa, ab, c, tie, zt)
        self.bg(6, 64)
        self.barrier()
        H = self.hialloc
        w = [H(6) for _ in range(2)]
        tk = []
        for ch in range(2):
            self.ds(f"ds_read_b128 {w[ch][0:4]}, {ad} offset:{ch*KCH}")
            tk.append(self.ds(f"ds_read_b64 {w[ch][4:6]}, {ad} offset:{ch*KCH+16}"))
        o = [[H(4), k.v(4, 2), k.v(4, 2)] for _ in range(2)]
        mid('C')
        self.bg(6, 64)
        for ch in range(2):
            self.lg.wait(tk[ch])
            for i in range(4): k(f"v_alignbit_b32 {o[ch][0][i]}, {w[ch][i+1]}, {w[ch][i]}, 16")
            self.ds(f"ds_write_b128 {ad}, {o[ch][0]} offset:{ch*KCH+KCS}")
            for i in range(4): k(f"v_mov_b32 {o[ch][1][i]}, {w[ch][i+1]}")
            self.ds(f"ds_write_b128 {ad}, {o[ch][1]} offset:{ch*KCH+2*KCS}")
            self.bg(3, 64)
            for i in range(4): k(f"v_alignbit_b32 {o[ch][2][i]}, {w[ch][i+2]}, {w[ch][i+1]}, 16")
            self.ds(f"ds_write_b128 {ad}, {o[ch][2]} offset:{ch*KCH+3*KCS}")
            self.bg(3, 64)
        mid('D')
        k.v.free(o[0][1], o[0][2], o[1][1], o[1][2])
        self.kimg = ([w[0], o[0][0], w[1], o[1][0]], z)
    def kimg_store(self):
        k = self.k
        regs, z = self.kimg
        yield 's'
        k(f"s_mul_i32 {self.b1}, {self.sTB}, {4*KIS}")
        for i in range(4):
            yield 's'
            k(f"s_add_u32 {self.b1}, {self.b1}, {WS['KI'] if i == 0 else KIS}")
            if self.o.get('k1', 1) and i & 1: continue
            yield 'v'
            self.vmem(f"buffer_store_dwordx4 {regs[i][0:4]}, {self.vT16}, {self.rWS}, {self.b1} offen sc1")
        a = regs[0][4]; b = regs[0][5]
        for ln in f"s_sub_u32 {self.b1}, {self.b1}, {3*KIS - 4096}\nv_bfe_u32 {a}, v0, 3, 2\nv_mul_u32_u24 {a}, {KIS}, {a}\nv_and_b32 {b}, 7, v0\nv_lshl_add_u32 {a}, {b}, 4, {a}".split('\n'):
            yield 's'
            k(ln)
        yield 'v'
        self.vmem(f"buffer_store_dwordx4 {z}, {a}, {self.rWS}, {self.b1} offen sc1")
        self.hiv.free(*regs, z)
    def kreg_load(self):
        k = self.k
        self.kw = [k.v(6, 2) for _ in range(2)]
        for ch in range(2):
            k(f"s_mul_i32 {self.b1}, {self.sTB}, {4*KIS}\ns_add_u32 {self.b1}, {self.b1}, {WS['KI'] + ch*2*KIS}")
            self.vmem(f"buffer_load_dwordx4 {self.kw[ch][0:4]}, {self.vT16}, {self.rWS}, {self.b1} offen sc1")
            self.ktok = self.vmem(f"buffer_load_dwordx2 {self.kw[ch][4:6]}, {self.vT16}, {self.rWS}, {self.b1} offen offset:16 sc1")
    def kreg_build(self):
        k = self.k
        self.vm.wait(self.ktok)
        o = [k.v(4, 2) for _ in range(3)]
        for ch in range(2):
            w = self.kw[ch]
            self.ds(f"ds_write_b128 {self.vT16}, {w[0:4]} offset:{ch*KCH}")
            for cpy in (1, 2, 3):
                for i in range(4):
                    if cpy == 2: k(f"v_mov_b32 {o[1][i]}, {w[i+1]}")
                    else: k(f"v_alignbit_b32 {o[cpy-1][i]}, {w[i+1+(cpy >> 1)]}, {w[i+(cpy >> 1)]}, 16")
                self.ds(f"ds_write_b128 {self.vT16}, {o[cpy-1]} offset:{ch*KCH+cpy*KCS}")
        k.v.free(*o, *self.kw)
    def kimg_load(self, i):
        k = self.k
        ch, cpy = i >> 2, i & 3
        k(f"s_mul_i32 {self.b1}, {self.sTB}, {4*KIS}\ns_add_u32 {self.b1}, {self.b1}, {WS['KI'] + (ch*2*KIS + cpy*2 if self.o.get('k1', 1) else (ch*2 + (cpy & 1))*KIS + (cpy >> 1)*4)}")
        k(f"s_lshl_b32 {self.b0}, {self.sW}, 10\ns_add_u32 m0, {self.b0}, {SB + i*KCS}")
        self.ktok = self.vmem(f"buffer_load_dwordx4 {self.vT16}, {self.rWS}, {self.b1} offen sc1 lds")

    def gather_addr(self, buf, vo=None):
        k = self.k
        vo = vo or k.v(); so = k.s(2); t = k.v()
        k(f"v_lshrrev_b32 {t}, 1, v0\nv_mul_u32_u24 {vo}, {BS}, {t}\nv_and_b32 {t}, 1, v0\nv_lshl_add_u32 {vo}, {t}, 4, {vo}")
        k(f"s_lshl_b32 {so[0]}, {self.sTB}, 5\ns_add_u32 {so[0]}, {so[0]}, {WS[buf]}\ns_add_u32 {so[1]}, {so[0]}, {128*BS}")
        k.v.free(t)
        return vo, so
    def conv_addr0(self, L):
        k = self.k
        self.cacc = k.v(32, 2)
        self.cgo, self.cgs = self.gather_addr('U%d' % L, self.cacc[8])
        self.cg = self.cacc[0:8]
    def conv_addr(self, L):
        k = self.k
        aa, ab, c = self.cA
        t = k.v(); uw = self.cacc[9]
        t0, t1, t2 = self.t0, self.t1, self.t2
        k(f"s_lshr_b32 {t0}, {self.sW}, 1\ns_andn2_b32 {t1}, 1, {self.sW}\ns_lshl_b32 {t1}, {t1}, 8")
        k(f"v_and_b32 {t}, 1, v0\nv_mul_u32_u24 {uw}, {UCS - 8}, {t}\nv_lshl_add_u32 {uw}, v0, 3, {uw}")
        k(f"s_mul_i32 {t2}, {t0}, {KCH}\ns_add_u32 {t2}, {t2}, {t1}")
        k(f"v_not_b32 {c}, v0\nv_and_b32 {t}, 12, {c}\nv_and_b32 {c}, 3, {c}\nv_mul_u32_u24 {aa}, {KCS}, {c}\nv_lshl_add_u32 {aa}, {t}, 1, {aa}")
        k(f"v_and_b32 {t}, 48, v0\nv_add3_u32 {aa}, {aa}, {t}, {t2}")
        k(f"s_mul_i32 {t2}, {t0}, {UCS}\ns_add_u32 {t2}, {t2}, {t1}")
        k(f"v_and_b32 {c}, 15, v0\nv_lshl_add_u32 {ab}, {c}, 5, {t}\nv_add_u32 {ab}, {t2}, {ab}")
        pw_ = k.s()
        k(f"s_mul_i32 {pw_}, {t0}, {PC}\ns_and_b32 {t2}, {self.sW}, 1\ns_mul_i32 {t2}, {t2}, {PH}\ns_add_u32 {pw_}, {pw_}, {t2}")
        pr = c
        k(f"s_mul_i32 {t2}, {self.sW}, {JS}\nv_bfe_u32 {t}, v0, 2, 2\nv_lshl_add_u32 {pr}, {t}, 8, {t2}\nv_bfe_u32 {t}, v0, 3, 1\nv_lshl_add_u32 {pr}, {t}, 7, {pr}")
        k(f"v_bfe_u32 {t}, v0, 4, 2\nv_lshl_add_u32 {pr}, {t}, 6, {pr}\nv_bfe_u32 {t}, v0, 1, 1\nv_lshl_add_u32 {pr}, {t}, 5, {pr}")
        k(f"v_and_b32 {t}, 1, v0\nv_mul_u32_u24 {t}, {PC}, {t}\nv_add_u32 {pr}, {pr}, {t}")
        k.v.free(t)
        self.ca = (aa, ab, uw, pw_, pr)
        self.cys = self.blk_off('Y%d' % L)
    def conv_gather_issue(self):
        self.cg_tok = self.gather_issue(self.cg, self.cgo, self.cgs[0], self.cgs[1])
    def conv(self, L, check=True):
        k = self.k
        aa, ab, uw, pw_, pr = self.ca
        acc = self.cacc
        NP = self.o.get('conv_pairs', 9)
        pool = [(k.v(4, 2), k.v(4, 2)) for _ in range(NP)]
        seq = [(it, J, C) for it in range(4) for J in range(8) for C in range(J + 1)]
        freeA = [p[0] for p in pool]; freeB = [p[1] for p in pool]
        order = [(it, i) for it in range(4) for i in range(8)]
        st = {'A': 0, 'B': 0}
        RA, RB, TA, TB = {}, {}, {}, {}
        def tryA():
            if st['A'] < 32 and freeA:
                it, C = order[st['A']]; r = freeA.pop(0); RA[it, C] = r
                off = 64 * (59 - 8*C - it)
                self.ds(f"ds_read_b64 {r[0:2]}, {aa} offset:{off}")
                TA[it, C] = self.ds(f"ds_read_b64 {r[2:4]}, {aa} offset:{off+8}")
                st['A'] += 1; return True
            return False
        def tryB():
            if st['B'] < 32 and freeB:
                it, E = order[st['B']]; r = freeB.pop(0); RB[it, E] = r
                TB[it, E] = self.ds(f"ds_read_b128 {r}, {ab} offset:{UB + 32 + 512*E + 64*(3-it)}")
                st['B'] += 1; return True
            return False
        while tryA(): pass
        self.gather_wait(self.cg_tok, self.cg, self.cgo, self.cgs[0], self.cgs[1],
                         lambda h: self.ds(f"ds_write_b128 {uw}, {self.cg[h*4:h*4+4]} offset:{UB + 512 + h*2048}"), acc[10], check)
        self.stamp(f'c{L}_got')
        self.barrier()
        k.s.free(self.cgs)
        self.stamp(f'c{L}_bar')
        for _ in range(5): tryB()
        self.hook(f'c{L}_main')
        pace = self.o.get('conv_pace', 2)
        allat = None; barred = False; nw = 0
        fin = {J: 108 + (J + 1) * (J + 2) // 2 - 1 for J in range(8)}
        def pwrite(i):
            J, r_ = i >> 2, i & 3
            self.ds(f"ds_write_addtid_b32 {acc[i]} offset:{J*JS + r_*256 + (r_ >> 1)*128}")
        for n, (it, J, C) in enumerate(seq):
            E = J - C
            while (it, C) not in RA: assert tryA()
            while (it, E) not in RB: assert tryB()
            self.lg.wait(max(TA[it, C], TB[it, E]))
            a4 = acc[J*4:J*4+4]
            first = (it == 0 and C == 0)
            k(f"v_mfma_f32_16x16x32_bf16 {a4}, {RB[it, E]}, {RA[it, C]}, {0 if first else a4}")
            if J == 7:
                freeA.append(RA[it, C]); freeB.append(RB[it, E])
            n0 = self.lg.n
            did = (tryA() or tryB()) if st['A'] <= st['B'] else (tryB() or tryA())
            if not barred: self.bg(max(0, pace - (self.lg.n - n0)), 16)
            if allat is None and st['A'] == 32 and st['B'] == 32: allat = n
            if allat is not None and not barred and n >= allat + self.o.get('conv_bar', 3):
                self.hook(f'c{L}_prebar')
                while self.qv.cur is not None and self.qv.kind is not None and self.qv.kind == 'v': self.qv.step()
                k(f"s_mov_b32 m0, {pw_}")
                self.barrier()
                barred = True
            elif barred:
                for _ in range(2 if (28 - nw) > (143 - n) else 1):
                    if nw < 32 and n >= fin[nw >> 2] + 3: pwrite(nw); nw += 1
        self.stamp(f'c{L}_mfma')
        while nw < 32: pwrite(nw); nw += 1
        for p in pool: k.v.free(*p)
        self.barrier()
        r = k.v(32, 2); tk = []
        for i in range(2):
            for e in range(2):
                for hf in range(2):
                    t_ = self.ds(f"ds_read_b128 {r[i*16+hf*8+e*4:i*16+hf*8+e*4+4]}, {pr} offset:{i*4*JS + hf*PH + e*16}")
                tk.append(t_)
        p = acc[0:8]
        self.filler(self.o.get('fill_c', 6), acc[8])
        for i in range(2):
            for e in range(2):
                self.lg.wait(tk[i*2+e])
                for j in (0, 2):
                    o_ = i*16 + e*4 + j
                    k(f"v_pk_add_f32 {r[o_:o_+2]}, {r[o_:o_+2]}, {r[o_+8:o_+10]}")
                for j in (0, 1):
                    k(f"v_cvt_pk_bf16_f32 {p[i*4+e*2+j]}, {r[i*16+e*4+2*j]}, {r[i*16+e*4+2*j+1]}")
            tok = self.store_half(p, i, self.vT16, self.cys)
        k("s_nop 0")
        k.v.free(r, acc, aa, ab, pr); k.s.free(self.cys, pw_)
        return tok

    def phase_L(self, x, ptok, L):
        k = self.k
        self.hook(f'l{L}_pre')
        g = k.v(8, 2); t = k.v(); ho = k.v(); hs = k.s(2)
        self.bg(6, 64)
        vo, so = self.gather_addr('Y%d' % L)
        self.bg(6, 64)
        la = self.ln_addr(RED + 256)
        k(f"v_bfe_u32 {t}, v0, 5, 1\nv_and_b32 {ho}, 0x1f0, {self.vT16}\nv_lshl_add_u32 {ho}, {t}, 17, {ho}")
        self.bg(6, 64)
        k(f"s_lshl_b32 {hs[0]}, {self.sTB}, 9")
        k(f"s_lshl_b32 {hs[1]}, {self.sW}, 18\ns_add_u32 {hs[0]}, {hs[0]}, {hs[1]}\ns_add_u32 {hs[0]}, {hs[0]}, {WS['H%d' % L]}\ns_add_u32 {hs[1]}, {hs[0]}, {4*HS}")
        self.flush()
        self.settle(ptok, f'Y{L}')
        tok = self.gather_issue(g, vo, so[0], so[1])
        self.hook(f'l{L}_post')
        assert not self.pend_init
        self.ln_begin()
        self.gather_wait(tok, g, vo, so[0], so[1], lambda h: self.add_half(x, g, h))
        self.ct_release()
        self.stamp(f'l{L}_got')
        u = self.layernorm(x, True, la, lambda: self.hook(f'l{L}_prebar'), [f"v_cvt_pk_bf16_f32 {self.XP[i]}, {x[2*i]}, {x[2*i+1]}" for i in range(8)])
        for h in range(2):
            self.pack16(g, u, h*4, h*4+4)
            tok = self.store_half(g, h, ho, hs)
        if L == 2:
            xs = self.blk_off('X3')
            for e in range(2): self.ds(f"ds_write_b128 {self.vT16}, {self.XP[e*4:e*4+4]} offset:{e*4096}")
            k(f"v_and_b32 {vo}, 0xf00, {self.vT16}\nv_bfe_u32 {t}, v0, 1, 1\nv_lshl_add_u32 {vo}, {t}, 7, {vo}\nv_bfe_u32 {t}, v0, 2, 2\nv_lshl_add_u32 {vo}, {t}, 4, {vo}\nv_and_b32 {t}, 1, v0\nv_lshl_add_u32 {vo}, {t}, 3, {vo}")
            self.lg.wait(self.lg.n)
            for e in range(2):
                for v_ in range(2): tk = self.ds(f"ds_read_b64_tr_b16 {u[e*4+v_*2:e*4+v_*2+2]}, {vo} offset:{e*4096 + v_*64}")
            self.lg.wait(tk)
            for e in range(2): self.store_half(u, e, self.vT16, xs)
            k.s.free(xs)
        k("s_nop 0")
        k.v.free(g, vo, ho, u, x, t); k.s.free(so, hs)
        return tok

    def gemm(self, which, L, ptok):
        k = self.k
        o = self.o
        final = (which == 2 and L == 2)
        tag = f'g{which}{L}'
        steps = 32 if which == 1 else 28
        H = steps // 2
        NS = o.get('ns1', 7) if which == 1 else o.get('ns2', 6)
        self.hook(tag + '_pre')
        acc = k.v(64, 2)
        buf = [k.v(8, 2) for _ in range(NS)]
        wl = k.v(8, 2) if which == 2 else None
        vo = k.v(2, 1); t = k.v(); rr = k.v()
        so = [k.s() for _ in range(NS)]; sbase = k.s(2); ps = k.s(2)
        src = ('H%d' if which == 1 else 'GA%d') % L
        skip = k.label('g1skip')
        t0, t1, t2 = self.t0, self.t1, self.t2
        sMi = self.sMi
        l = vo[1]
        self.lane(l)
        sN = self.sN1 if which == 1 else self.sN2
        pb = self.pB1 if which == 1 else self.pB2
        k(f"s_lshr_b32 {t0}, {self.sW}, 1\ns_lshl_b32 {t0}, {t0}, 6\ns_lshl_b32 {t1}, {sN}, 7\ns_add_u32 {t0}, {t0}, {t1}")
        bb = acc[32:40]
        if not final:
            k(f"v_lshrrev_b32 {t}, 5, {l}\nv_lshl_add_u32 {t}, {t}, 4, {t0}")
            self.vmem(f"global_load_dwordx4 {bb[0:4]}, {t}, {pb}")
            btok = self.vmem(f"global_load_dwordx4 {bb[4:8]}, {t}, {pb} offset:32")
        else:
            vTok = k.v(); xo = acc[40]; b2v = acc[42:44]; tmp = acc[41]; xs = k.s()
            k(f"v_and_b32 {vTok}, 19, {l}\nv_bfe_u32 {tmp}, {l}, 2, 1\nv_lshl_add_u32 {vTok}, {tmp}, 3, {vTok}\nv_bfe_u32 {tmp}, {l}, 3, 1\nv_lshl_add_u32 {vTok}, {tmp}, 2, {vTok}")
            k(f"v_lshl_add_u32 {t}, {vTok}, 1, {t0}\nv_mov_b32 {b2v[0]}, 0")
            self.vmem(f"global_load_short_d16_hi {b2v[0]}, {t}, {pb}")
            k(f"v_lshrrev_b32 {tmp}, 4, {t}\nv_mul_u32_u24 {xo}, {BS}, {tmp}\nv_and_b32 {tmp}, 14, {t}\nv_lshl_add_u32 {xo}, {tmp}, 3, {xo}\nv_lshrrev_b32 {tmp}, 5, {l}\nv_lshl_add_u32 {xo}, {tmp}, 3, {xo}")
            k(f"s_lshl_b32 {xs}, {sMi}, 9\ns_lshl_b32 {t1}, {self.sM}, 10\ns_add_u32 {xs}, {xs}, {t1}\ns_add_u32 {xs}, {xs}, {WS['X3']}")
            def xload(emit):
                for q in range(4): r_ = emit(f"buffer_load_dwordx2 {bb[2*q:2*q+2]}, {xo}, {self.rWS}, {xs} offen offset:{q*128} sc1")
                return r_
            btok = xload(self.vmem)
        self.bg(6, 64)
        rs = [k.s() for _ in range(4)]
        for jj in range(4): k(f"s_xor_b32 {rs[jj]}, {self.sW}, {jj}\ns_mul_i32 {rs[jj]}, {rs[jj]}, 12288")
        k(f"v_lshl_add_u32 {rr}, {l}, 2, {rs[0]}")
        if which == 2 and o.get('par2', 1):
            k(f"s_and_b32 {t1}, s2, 1\ns_lshl_b32 {t1}, {t1}, 10\nv_lshl_add_u32 {vo[0]}, {l}, 4, {t1}")
        else: k(f"v_lshlrev_b32 {vo[0]}, 4, {l}")
        k(f"v_xor_b32 {vo[1]}, 1024, {vo[0]}")
        if which == 1:
            k(f"s_lshl_b32 {t0}, {self.sM}, 1\ns_add_u32 {t0}, {t0}, {sMi}\ns_lshl_b32 {t0}, {t0}, 2\ns_add_u32 {t0}, {t0}, {self.sW}\ns_lshl_b32 {t0}, {t0}, 5\ns_add_u32 {t0}, {t0}, {self.sX1}")
            k(f"s_lshl_b32 {t0}, {t0}, 10\ns_add_u32 {sbase[1]}, {t0}, {WS[src]}\ns_xor_b32 {sbase[0]}, {sbase[1]}, {HS // 2}")
        else:
            k(f"s_mul_i32 {t0}, {self.sM}, {GS}\ns_mul_i32 {t1}, {self.sW}, {28*1024}\ns_add_u32 {t0}, {t0}, {t1}\ns_add_u32 {t0}, {t0}, {WS[src]}\ns_mul_i32 {t1}, {sMi}, {GS // 2}")
            k(f"s_add_u32 {sbase[1]}, {t0}, {t1}\ns_sub_u32 {t0}, {t0}, {t1}\ns_add_u32 {sbase[0]}, {t0}, {GS // 2}")
        self.bg(6, 64)
        if which == 1:
            k(f"s_lshr_b32 {t0}, {self.sW}, 1\ns_lshl_b32 {t0}, {t0}, 11\ns_lshl_b32 {t1}, {self.sN1}, 12\ns_add_u32 {t0}, {t0}, {t1}")
            k(f"s_lshl_b32 {t1}, {self.sM}, 1\ns_add_u32 {t1}, {t1}, {sMi}\ns_mul_i32 {t1}, {t1}, {GS // 2}\ns_add_u32 {t0}, {t0}, {t1}\ns_add_u32 {ps[0]}, {t0}, {WS['GA%d' % L]}\ns_add_u32 {ps[1]}, {ps[0]}, 1024")
        elif not final:
            k(f"s_lshr_b32 {t0}, {self.sW}, 1\ns_lshl_b32 {t1}, {self.sN2}, 1\ns_add_u32 {t0}, {t0}, {t1}\ns_mul_i32 {t0}, {t0}, {4*BS}")
            k(f"s_lshl_b32 {t1}, {sMi}, 9\ns_add_u32 {t0}, {t0}, {t1}\ns_lshl_b32 {t1}, {self.sM}, 10\ns_add_u32 {t0}, {t0}, {t1}")
            k(f"s_add_u32 {ps[0]}, {t0}, {WS['Z1']}\ns_add_u32 {ps[1]}, {ps[0]}, {2*BS}")
        else:
            k(f"s_lshl_b32 {t0}, {self.sN2}, 16\ns_lshl_b32 {t1}, {self.sM}, 7\ns_add_u32 {ps[0]}, {t0}, {t1}\ns_add_u32 {ps[1]}, {ps[0]}, 32768")
            self.srd(self.rW1, self.pOUT, S * D * 2)
        hint = which == 2 and o.get('ghint', 0)
        if hint: hst = self.hint_issue(src, acc[60], acc[61])
        self.flush()
        if L == 1: self.drain_ready(self.seq.index(15) + 1 if which == 1 else 23)
        if hint: self.hint_wait(hst, o.get('hsleep', 0), o.get('hpost', 0))
        self.settle(ptok, src)
        self.hook(tag + '_go')
        if which == 1:
            stub = k.label('g1idle')
            k(f"s_cmp_ge_u32 {self.sJN}, 7\ns_cbranch_scc1 {stub}")
            st0 = self.w_state()
            def idle():
                st = self.w_state()
                self.w_restore(st0)
                k(f"{stub}:")
                self.hook(tag + '_main'); self.hook(tag + '_tail')
                while self.qv.peek() is not None: self.force(self.qv)
                while self.w_drained < st[1]: self.qd.peek(); self.qd.step()
                assert self.w_issued == st[0] and self.w_drained == st[1], (self.w_issued, self.w_drained, st[:2])
                if L == 1:
                    lab = k.label('ep')
                    k(f"s_cmp_lg_u32 s2, 255\ns_cbranch_scc1 {lab}\nv_mov_b32 {acc[4]}, {self.sTag}\nv_mov_b32 {acc[5]}, {WS['EP']}")
                    k(f"buffer_store_dword {acc[4]}, {acc[5]}, {self.rWS}, 0 offen sc1\n{lab}:")
                self.hint_wait(self.hint_issue('GA%d' % L, acc[60], acc[61]), o.get('isleep', 4), o.get('ipost', 0))
                k(f"s_waitcnt vmcnt(0) lgkmcnt(0)\ns_branch {skip}")
                self.w_restore(st)
            assert 15 in self.seq[:self.w_drained]
        else:
            assert self.w_drained == 23 and self.w_issued == 30
        self.stamp(tag + '_go')
        tok = {}
        def ld_a(i):
            s = so[i % NS]; ph, j = divmod(i, H)
            if which == 1: k(f"s_xor_b32 {s}, {sbase[ph]}, {j << 11}")
            elif j & 1 == 0: k(f"s_add_u32 {s}, {self.sQ[j >> 1]}, {sbase[ph]}")
            else: k(f"s_add_u32 {s}, {so[(i - 1) % NS]}, 2048")
            self.vmem(f"buffer_load_dwordx4 {buf[i % NS][0:4]}, {vo[0]}, {self.rWS}, {s} offen sc1")
        def ld_b(i):
            tok[i] = self.vmem(f"buffer_load_dwordx4 {buf[i % NS][4:8]}, {vo[1]}, {self.rWS}, {so[i % NS]} offen sc1")
        rel = [k.label('reload') for _ in range(NS)]
        def routines():
            for s in range(NS):
                fin = k.label('rfin')
                k(f"{rel[s]}:")
                if o.get('gsleep', 2): k(f"s_sleep {o.get('gsleep', 2)}")
                for j in range(NS - 1):
                    q = (s + j) % NS
                    k(f"buffer_load_dwordx4 {buf[q][0:4]}, {vo[0]}, {self.rWS}, {so[q]} offen sc1")
                    k(f"buffer_load_dwordx4 {buf[q][4:8]}, {vo[1]}, {self.rWS}, {so[q]} offen sc1")
                k(f"s_add_u32 {self.sSpin}, {self.sSpin}, 1\ns_waitcnt vmcnt({2*(NS-2)})")
                self.check8(buf[s], t)
                k(f"s_cmp_ge_u32 {self.sSpin}, {SPIN_MAX}\ns_cbranch_scc1 {fin}\ns_cbranch_vccnz {rel[s]}\n{fin}:")
                k(f"s_setpc_b64 {self.sRet}")
        self.outline(routines)
        def check_tail(i):
            rt, ok = k.label('rt'), k.label('ok')
            k(f"s_cbranch_vccnz {rt}\n{ok}:")
            settle = "s_waitcnt vmcnt(0)\n" if i > steps - NS else ""
            self.outline(lambda: k(f"{rt}:\ns_call_b64 {self.sRet}, {rel[i % NS]}\n{settle}s_branch {ok}"))
        wtok = {}
        def wl_load(j, ni):
            for u in range(2): wtok[ni] = self.w_read1(wl, self.slot_of[23 + j // 2], j & 1, ni*2 + u)
        def mfma(i, ni, e):
            ph, j = divmod(i, H)
            qd = (1 - ph) + 2*ni
            if which == 1: w = self.W1A[(2*j + e)*8 + ni*4:(2*j + e)*8 + ni*4 + 4]
            elif e == 0: w = self.W2V[j*8 + ni*4:j*8 + ni*4 + 4]
            else: w = wl[ni*4:ni*4+4]; self.lg.wait(wtok[ni])
            a = buf[i % NS][e*4:e*4+4]; d = acc[qd*16:qd*16+16]
            c = 0 if (j == 0 and e == 0 and qd != 0) else d
            if final: k(f"v_mfma_f32_32x32x16_bf16 {d}, {a}, {w}, {c}")
            else: k(f"v_mfma_f32_32x32x16_bf16 {d}, {w}, {a}, {c}")
            if which == 2 and e == 1 and i + 1 < steps: wl_load((i + 1) % H, ni)
        k(f"s_mov_b32 {self.sSpin}, 0")
        for i in range(NS - 1): ld_a(i); ld_b(i)
        self.vm.wait(btok)
        if final:
            rt, ok = k.label('x3rt'), k.label('x3ok')
            self.check8(bb, t)
            k(f"s_cbranch_vccnz {rt}\n{ok}:")
            def body():
                k(f"{rt}:"); xload(k); k("s_waitcnt vmcnt(0)"); self.check8(bb, t)
                k(f"s_add_u32 {self.sSpin}, {self.sSpin}, 1\ns_cmp_ge_u32 {self.sSpin}, {SPIN_MAX}\ns_cbranch_scc1 {ok}\ns_cbranch_vccnz {rt}\ns_branch {ok}")
            self.outline(body)
            k.s.free(xs)
        self.unpack(acc[0:16], bb)
        if final:
            if o.get('perturb'): k(f"v_add_f32 {b2v[0]}, {f2h(o['perturb'])}, {b2v[0]}")
            for i in range(0, 16, 2): k(f"v_pk_add_f32 {acc[i:i+2]}, {acc[i:i+2]}, {b2v} op_sel_hi:[1,0]")
        if which == 2:
            self.vm.wait(self.w_tok[29])
            wl_load(0, 1); wl_load(0, 0)
        self.lg.wait(self.lg.n)
        self.vm.wait(tok[0]); self.check8(buf[0], t); check_tail(0)
        self.stamp(tag + '_first')
        self.hook(tag + '_main')
        dead = [buf[j % NS] for j in range(steps - NS, steps - 1)]
        ex, p = dead[0], dead[1]
        def wr(jj):
            yield lambda: k(f"s_add_u32 m0, {rs[jj]}, {(jj-1)*4096}")
            for r_ in range(16): yield (lambda r_=r_: self.ds(f"ds_write_addtid_b32 {acc[jj*16+r_]} offset:{r_*256}"))
        rtk = {}
        def rd(jj):
            def one(r_): rtk[jj, r_] = self.ds(f"ds_read2st64_b32 {acc[jj*16+r_:jj*16+r_+2]}, {rr} offset0:{(jj-1)*16+r_} offset1:{(jj-1)*16+r_+1}")
            for r_ in range(0, 16, 2): yield (lambda r_=r_: one(r_))
        def add13(r_):
            self.lg.wait(rtk[3, r_])
            k(f"v_pk_add_f32 {acc[16+r_:18+r_]}, {acc[16+r_:18+r_]}, {acc[48+r_:50+r_]}")
        xq = list(wr(3)) + list(wr(1)) + [None] * o.get('xgap', 3) + [self.barrier] + list(rd(1)) + list(rd(3)) + [None] * 2 + [(lambda r_=r_: add13(r_)) for r_ in range(0, 16, 2)]
        nwr = 34
        def xslot(n):
            took = 0
            while n > 0 and xq:
                f = xq.pop(0); n -= 1; took += 1
                if f: f()
            return took
        fpos = o.get('gaflag', 1) if which == 1 else (o.get('zflag', 0) if not final else 0)
        def flag(pos):
            if fpos == pos: self.flag_set('GA%d' % L if which == 1 else 'Z1', dead[2][4:8], dead[2][2])
        xn = len(xq)
        xs_ = o.get('xs1', (2, 1, 1, 1)) if which == 1 else o.get('xs2', (2, 1, 0, 2))
        for i in range(steps):
            b = buf[(i + 1) % NS]
            last = i + 1 == steps
            inq = i >= H
            if i <= steps - NS or len(xq) > xn - nwr: self.bg_hold = True
            else: self.bg_hold = False
            slot = (lambda n: (xslot(n) if inq else 0) or self.bg(n, 32))
            mo = [(1, 0), (0, 0), (1, 1), (0, 1)] if o.get('alt', 1) and not last else [(1, 0), (1, 1), (0, 0), (0, 1)]
            mfma(i, *mo[0])
            if last: mfma(i, *mo[1]); break
            if i - 1 + NS < steps: ld_a(i - 1 + NS)
            if i != H: slot(xs_[0])
            mfma(i, *mo[1])
            if i - 1 + NS < steps: ld_b(i - 1 + NS)
            self.vm.wait(tok[i + 1])
            k(f"v_max3_u32 {t}, {b[0]}, {b[1]}, {b[2]}\nv_max3_u32 {t}, {t}, {b[3]}, {b[4]}")
            if i != H: slot(xs_[1])
            mfma(i, *mo[2])
            k(f"v_max3_u32 {t}, {t}, {b[5]}, {b[6]}\nv_max_u32 {t}, {t}, {b[7]}\nv_cmp_eq_u32 vcc, -1, {t}")
            if inq: xslot(xs_[2])
            mfma(i, *mo[3])
            check_tail(i + 1)
            slot(xs_[3])
        xslot(1000)
        self.bg_hold = False
        while self.qv.cur is not None and self.qv.kind == 'v': self.qv.step()
        mfma(steps - 1, 0, 0)
        self.stamp(tag + '_mfma')
        self.count(tag)
        flag(4)
        if which == 2 and not final: self.set_sent(dead[3][0:4])
        mfma(steps - 1, 0, 1)
        for f in wr(2): f()
        self.hook(tag + '_tail')
        flag(5)
        self.stamp(tag + '_wA')
        for r_ in range(0, 16, 2): k(f"v_pk_add_f32 {acc[r_:r_+2]}, {acc[r_:r_+2]}, {acc[16+r_:18+r_]}")
        self.barrier()
        for f in rd(2): f()
        n0 = len(k.lines)
        flag(1)
        if which == 1:
            c0 = 2 * math.sqrt(2 / math.pi) * LOG2E; c1 = c0 * 0.044715
            cc = k.s(2); cv = dead[2][0:2]
            k(f"s_mov_b32 {cc[0]}, {f2h(-c1)}\ns_mov_b32 {cc[1]}, {f2h(-c1)}\nv_mov_b32 {cv[0]}, {f2h(-c0)}\nv_mov_b32 {cv[1]}, {f2h(-c0)}")
        elif not final:
            k(f"v_bfe_u32 {t}, v0, 5, 1\nv_mul_u32_u24 {t}, {BS}, {t}\nv_and_b32 {ex[1]}, 0x1ff, {vo[0]}\nv_add_u32 {t}, {t}, {ex[1]}")
        else:
            oa = dead[2]
            k(f"s_lshr_b32 {t0}, {self.sW}, 1\ns_lshl_b32 {t0}, {t0}, 12\ns_lshl_b32 {t1}, {sMi}, 2")
            k(f"v_and_b32 {t}, 7, {vTok}\nv_xor_b32 {t}, {t1}, {t}\nv_lshl_add_u32 {oa[0]}, {vTok}, 7, {t0}\nv_lshl_add_u32 {oa[0]}, {t}, 4, {oa[0]}\nv_bfe_u32 {t}, v0, 5, 1\nv_lshl_add_u32 {oa[0]}, {t}, 3, {oa[0]}")
            for q in range(1, 4): k(f"v_xor_b32 {oa[q]}, {q*16}, {oa[0]}")
        self.bg(4, 200)
        self.filler(o.get('fill_g', 8) - (len(k.lines) - n0), ex[2])
        self.stamp(tag + '_red')
        for h in range(2):
            R = range(h*8, h*8 + 8, 2)
            for e in R:
                self.lg.wait(rtk[2, e])
                k(f"v_pk_add_f32 {acc[e:e+2]}, {acc[e:e+2]}, {acc[32+e:34+e]}")
                if final and e & 2:
                    q = e >> 2
                    self.pack16(p, acc, q*2, q*2 + 2)
                    self.ds(f"ds_write_b64 {oa[q]}, {p[q*2:q*2+2]} offset:{WB}")
            if final: continue
            if which == 1:
                w = acc[16:32]
                for e in R: k(f"v_pk_mul_f32 {w[e:e+2]}, {acc[e:e+2]}, {acc[e:e+2]}")
                for e in R: k(f"v_pk_fma_f32 {w[e:e+2]}, {w[e:e+2]}, {cc}, {cv}")
                for e in R: k(f"v_pk_mul_f32 {w[e:e+2]}, {w[e:e+2]}, {acc[e:e+2]}")
                self.bg(3, 64)
                for e in range(h*8, h*8 + 8): k(f"v_exp_f32 {w[e]}, {w[e]}")
                self.bg(3, 64)
                for e in R: k(f"v_pk_add_f32 {w[e:e+2]}, {w[e:e+2]}, 1.0 op_sel_hi:[1,0]")
                for e in range(h*8, h*8 + 8): k(f"v_rcp_f32 {w[e]}, {w[e]}")
                self.bg(3, 80)
                for e in R: k(f"v_pk_mul_f32 {acc[e:e+2]}, {acc[e:e+2]}, {w[e:e+2]}")
            self.pack16(p, acc, h*4, h*4 + 4)
            ptok = self.store_half(p, h, vo[0] if which == 1 else t, ps)
            flag(2 + h)
        if final:
            k(f"v_bfe_u32 {t}, v0, 3, 3\nv_lshlrev_b32 {t}, 4, {t}\nv_xor_b32 {oa[4]}, {t}, {self.vT16}")
            k(f"v_lshrrev_b32 {t}, 3, v0\nv_and_b32 {oa[5]}, 0x70, {self.vT16}\nv_lshl_add_u32 {oa[5]}, {t}, 10, {oa[5]}")
            self.barrier()
            tk = [self.ds(f"ds_read_b128 {p[e*4:e*4+4]}, {oa[4]} offset:{WB + e*4096}") for e in range(2)]
            for e in range(2):
                self.lg.wait(tk[e])
                ptok = self.vmem(f"buffer_store_dwordx4 {p[e*4:e*4+4]}, {oa[5]}, {self.rW1}, {ps[e]} offen{o.get('outflag', ' sc1')}")
        self.flush()
        if which == 1:
            k.s.free(cc)
            k(f"{skip}:")
            self.outline(idle)
        k("s_nop 0")
        if final: k.v.free(vTok)
        k.v.free(acc, vo, t, rr, *buf)
        if wl: k.v.free(wl)
        k.s.free(sbase, ps, *so, *rs)
        return ptok

    def phase_S(self, ptok):
        k = self.k
        self.cA = [k.v() for _ in range(3)]
        x = k.v(16, 2); g = k.v(8, 2)
        self.unpack(x, self.XP)
        self.set_sent(self.XP[0:4])
        self.hook('s_pre'); self.flush()
        if self.o.get('kpos', 2) == 2: self.kreg_load()
        dsk, dtok = self.load_dskip()
        so = self.blk_off('Z1'); us = self.blk_off('U2')
        la = self.ln_addr(RED)
        z = self.zero_regs(); zt = k.v()
        self.ktail_addr(zt)
        if self.o.get('zflag'): self.hint_wait(self.hint_issue('Z1', g[0], g[1]), self.o.get('hsleep', 0), self.o.get('hpost', 0))
        self.settle(ptok, 'Z1')
        tok = self.gather_issue(g, self.vT16, so[0], so[1])
        if self.o.get('kpos', 2) == 3: self.kreg_load()
        self.hook('s_post'); self.flush()
        if self.o.get('kpos', 2) == 0:
            for i in range(8): self.kimg_load(i)
        self.zero_pads(z)
        self.ds(f"ds_write_b128 {zt}, {z} offset:4096")
        k.v.free(z, zt)
        self.ln_begin()
        self.gather_wait(tok, g, self.vT16, so[0], so[1], lambda h: self.add_half(x, g, h))
        self.ct_release()
        self.stamp('s_got')
        self.hook('s_got'); self.flush()
        k.v.free(g); k.s.free(so)
        tok = self.ln_to_conv(x, dsk, dtok, us, la, prepub=lambda: self.vm.wait(self.y2_tok))
        return x, tok

    def build(self):
        k = self.k
        self.plan()
        self.prologue()
        x = k.v(16, 2); a = k.v()
        for i in range(16): k(f"v_mov_b32 {x[i]}, 0")
        k(f"v_lshlrev_b32 {a}, 1, v0\ns_add_u32 {self.t3}, {self.sTB8}, 4096")
        self.kgen_load()
        tagv = self.hialloc(4); fa = self.hialloc(1); fv = self.hialloc(1)
        k(f"v_mov_b32 {fa}, {WS['EP']}")
        k("s_waitcnt lgkmcnt(0)")
        self.stamp('start')
        k(f"s_mov_b32 {self.sOneLo}, 0x3f80\ns_mov_b32 {self.sOneHi}, 0x3f800000")
        rX = self.rW2
        self.srd(rX, self.pX0, S * D * 2)
        self.srd(self.rWS, self.PW, WS['END'])
        for i in range(8):
            for e in range(2):
                xtok = self.vmem(f"buffer_load_short_d16_hi {x[e*8+i]}, {a}, {rX}, {self.sTB8 if i < 4 else self.t3} offen offset:{(i & 3)*1024 + e*512}")
        k.v.free(a)
        dsk, dtok = self.load_dskip()
        self.kgen_load2()
        self.vmem(f"buffer_load_dword {tagv[0]}, {fa}, {self.rWS}, 0 offen sc1")
        la = self.ln_addr(RED); us = self.blk_off('U1')
        self.srd(self.rW1, self.pW1, S * F * 2)
        self.srd(self.rW2, self.pW2, S * F * 2)
        self.w_setup()
        if self.o.get('idle_now1', 1):
            k(f"s_cmp_ge_u32 {self.sJN}, 7\ns_cselect_b32 {self.sB1}, 0x40000000, {self.sB1}")
        self.hook('p0_a')
        def stage(nm):
            if nm == 'w': self.w_setup2()
            if nm == 'k': self.kgen_addr()
            if nm == 'z':
                z = self.hialloc(4); zt = self.hialloc(1)
                for i in range(4): k(f"v_mov_b32 {z[i]}, 0")
                self.zero_pads(z); self.ktail_addr(zt); self.kz = (z, zt)
            if nm == 'g':
                self.conv_addr0(1); self.fs = self.flag_addr('U1', fa, fv)
            if nm == 'c': self.conv_addr(1)
        early = self.o.get('early', 'kzg')
        for nm in early:
            self.bg(6, 64); stage(nm)
        self.hook('p0_a2')
        self.flush()
        self.stamp('pre')
        self.vm.wait(xtok)
        self.stamp('x0')
        at = dict(pub='L', arr=120, poll='B', chk='C'); at.update(self.o.get('at', {}))
        hold = self.hialloc(8) if at['pub'] != 'L' else None
        self.ln_begin()
        self.ptok = self.ln_to_conv(x, dsk, dtok, us, la, hold=hold)
        def pub():
            if hold:
                self.hook('p0_prepub')
                for h in range(2): self.store_half(hold, h, self.vT16, us)
                k.s.free(us); self.hiv.free(hold)
            for _ in self.init_buf('Y1'): pass
            self.itok = self.init_tok
            self.stamp('p0_pub')
            self.hook('p0_b')
        def arr():
            self.vm.wait(self.itok)
            k(f"s_barrier\nv_readfirstlane_b32 {self.sTag}, {tagv[0]}\ns_add_u32 {self.sTag}, {self.sTag}, {hex(TAGC)}")
            self.flag_set('U1', tagv, fv)
            self.atok = self.vm.n
            self.stamp('arr')
            self.hook('p0_b2')
        def poll():
            self.hook('p0_c')
            if at['poll'] == at['arr']: self.vm.wait(self.atok); k("s_barrier")
            self.ftok = self.flag_poll(fa, fv, self.fs)
            self.hook('p0_c2')
        def chk():
            self.flag_wait(fa, fv, self.fs, self.ftok, 0)
            self.stamp('b0')
            self.conv_gather_issue()
            self.hook('p0_d')
        def point(c):
            for nm, fn in (('pub', pub), ('arr', arr), ('poll', poll), ('chk', chk)):
                if at[nm] == c: fn()
        point('L')
        for nm in 'kzg':
            if nm not in early: stage(nm)
        if 'w' not in early: stage('w'); early += 'w'
        self.hook('p0_t')
        self.kgen_tables({n: (lambda n=n: point(n)) for n in at.values() if isinstance(n, int)})
        self.stamp('ktab')
        self.kgen_mfma(point)
        if 'c' not in early: stage('c'); self.bg(6, 64)
        point('E')
        self.hiv.free(tagv, fa, fv)
        self.hook('p0_e')
        self.barrier()
        self.stamp('kdone')
        ptok = self.conv(1, check=False)
        self.stamp('c1_pub')
        ptok = self.phase_L(x, ptok, 1)
        self.stamp('l1_pub')
        ptok = self.gemm(1, 1, ptok)
        self.stamp('g11_pub')
        ptok = self.gemm(2, 1, ptok)
        self.stamp('g21_pub')
        x, ptok = self.phase_S(ptok)
        self.stamp('s_pub')
        if self.o.get('kpos', 2) == 1:
            for i in range(8): self.kimg_load(i)
        if self.o.get('kpos', 2) >= 2: self.kreg_build()
        self.hook('c2_pre')
        self.conv_addr0(2); self.bg(6, 64)
        self.conv_addr(2); self.flush()
        self.settle(max(ptok, self.ktok), 'U2')
        self.conv_gather_issue()
        ptok = self.conv(2)
        self.stamp('c2_pub')
        ptok = self.phase_L(x, ptok, 2)
        self.stamp('l2_pub')
        ptok = self.gemm(1, 2, ptok)
        self.stamp('g12_pub')
        ptok = self.gemm(2, 2, ptok)
        if self.o.get('leak'):
            self.vm.wait_all()
            if not self.prof: self.stamp('end')
            A, B, C = self.sLeak
            lp = k.label('leak')
            k(f"s_sub_u32 {A[0]}, {B[0]}, {A[0]}\ns_mul_i32 {A[0]}, {A[0]}, {self.o['leak'][2]}\ns_min_u32 {A[0]}, {A[0]}, 100000")
            k(f"s_memrealtime {B}\ns_waitcnt lgkmcnt(0)\n{lp}:\ns_memrealtime {C}\ns_waitcnt lgkmcnt(0)\ns_sub_u32 {C[0]}, {C[0]}, {B[0]}\ns_cmp_lt_u32 {C[0]}, {A[0]}\ns_cbranch_scc1 {lp}")
        if self.prof:
            self.vm.wait_all()
            self.stamp('end')
            a = k.v()
            k(f"s_lshl_b32 {self.t0}, s2, 10\ns_add_u32 {self.t0}, {self.t0}, {WS['PROF']}\nv_lshlrev_b32 {a}, 2, v0")
            k(f"buffer_store_dword {self.vStamp}, {a}, {self.rWS}, {self.t0} offen")
        k(f"{self.lend}:\ns_endpgm")
        k.lines += self.ool
        k(f"{k.name}_codeend:")
        assert self.qv.peek() is None and self.qd.peek() is None
        return k

    def plan(self):
        self.sched = {
            'p0_a': 'I1!',
            'p0_b2': 'I1',
            'p0_c': 'flush',
            'p0_d': 'V2 sH1 sGA1',
            'p0_e': 'flush',
            'c1_main': 'I2 N1400 I2',
            'c1_prebar': 'initwait',
            'l1_pre': 'sZ1 sU2 I3',
            'l1_post': 'I3! R',
            'l1_prebar': 'initwait',
            'g11_pre': 'I6 K',
            'g11_main': 'I7',
            'g21_pre': 'I5',
            's_got': 'sY2',
            's_pre': 'C',
            'c2_main': 'G250 sH2 sGA2 sX3',
            'c2_prebar': 'initwait',
        }
        self.sched.update(self.o.get('sched', {}))
        self.y2_tok = None
        done = set([w.rstrip('!')[1:] for v in self.sched.values() for w in v.split() if w[0] == 's'])
        assert done >= {'H1', 'GA1', 'Z1', 'U2', 'Y2', 'H2', 'GA2', 'X3'}, done

HEADER = open('cdna_kernels/' + NAME + '.s.ref').read().split('; Override launch')[0].rstrip('\n').split('\n')

def generate(path, prof=False, opts=None, aslist=False):
    g = Gen(prof, opts)
    k = g.build()
    out = list(HEADER)
    if aslist: out.append(f"; @launch kernel={k.name} grid=(256,1,1) block=(256,1,1) lds={LDS_TOTAL}")
    else: out.append(f"; @launch grid=(256,1,1) block=(256,1,1) lds={LDS_TOTAL}")
    out.append('.amdgcn_target "amdgcn-amd-amdhsa--gfx950"')
    out.append(k.text(align=g.o.get('align', 1)))
    out.append('.section .rodata,"a"\n.p2align 6')
    out.append(k.desc())
    open(path, 'w').write('\n'.join(out))
    return g

def gen_prof(name, opts):
    g = generate(f'work/{name}.s', prof=True, opts=opts, aslist=True)
    open(f'work/{name}.names', 'w').write('\n'.join(g.stamp_names))

if __name__ == '__main__':
    gen_prof('k_prof', {})
    generate('k_list.s', aslist=True)
    g = generate('k_final.s')
    print('vgpr hi', g.k.v.hi, 'sgpr hi', g.k.s.hi, 'lines', len(g.k.lines))
```
